```python
import torch

def _softmax(x, axis=-1):
    return torch.softmax(x, dim=axis)
def _gelu(x):
    return torch.nn.functional.gelu(x, approximate="tanh")
def _silu(x):
    return torch.nn.functional.silu(x)
def _sigmoid(x):
    return torch.sigmoid(x)
def _layernorm(x, axis=-1, eps=1e-5):
    m = x.mean(dim=axis, keepdim=True)
    v = x.var(dim=axis, keepdim=True, unbiased=False)
    return (x - m) / torch.sqrt(v + eps)
def _scatter_add(tgt, idx, src, axis=0):
    return tgt.clone().index_add_(axis, idx, src)
def _segment_sum(src, seg, n):
    out = torch.zeros((n,) + src.shape[1:], dtype=src.dtype)
    return out.index_add_(0, seg, src)
def _pad(x, pw):
    flat = tuple(v for pair in reversed(pw) for v in pair)
    return torch.nn.functional.pad(x, flat)

kernel_name = 'standalone__glu_gated_reglu__prompt'

def setup_inputs():

    _w = (lambda a: (lambda t: t.to(torch.bfloat16) if t.is_floating_point() else t)(torch.as_tensor(a)))
    B, S, D, F = 1, 2048, 640, 1536
    return {
        "x": _w((lambda *s: torch.randn(*s, dtype=torch.bfloat16) * 0.05)(B, S, D)),
        "W_gate": _w((lambda *s: torch.randn(*s, dtype=torch.bfloat16) * 0.05)(D, F) * (2.0 / D) ** 0.5),
        "W_up": _w((lambda *s: torch.randn(*s, dtype=torch.bfloat16) * 0.05)(D, F) * (2.0 / D) ** 0.5),
        "W_down": _w((lambda *s: torch.randn(*s, dtype=torch.bfloat16) * 0.05)(F, D) * (1.0 / F) ** 0.5),
    }

def reference(x, W_gate, W_up, W_down):
    gate = torch.einsum("bsd,df->bsf", x, W_gate)
    up = torch.einsum("bsd,df->bsf", x, W_up)
    gate = gate * (lambda x, dt: x.to(dt))(gate > 0, gate.dtype)
    h = gate * up
    return torch.einsum("bsf,fd->bsd", h, W_down)
```

```python
import re


class Op:
    __slots__ = ("text", "kind", "need_vm", "need_lg", "rd", "wr", "lds_r", "lds_w", "private",
                 "passes", "name", "done_vm_at", "done_lg_at", "pos", "src")

    def __init__(self, text, kind, need_vm=(), need_lg=(), rd=(), wr=(), lds_r=(), lds_w=(),
                 private=False, passes=0, name="", src=()):
        self.text = text
        self.kind = kind
        self.need_vm = list(need_vm)
        self.need_lg = list(need_lg)
        self.rd = set(rd)
        self.wr = set(wr)
        self.lds_r = list(lds_r)
        self.lds_w = list(lds_w)
        self.private = private
        self.passes = passes
        self.name = name
        self.done_vm_at = None
        self.done_lg_at = None
        self.pos = None
        self.src = list(src)


def regs(kind, base, n):
    return [f"{kind}{base + i}" for i in range(n)]


def rng(kind, base, n):
    return f"{kind}{base}" if n == 1 else f"{kind}[{base}:{base + n - 1}]"


class R:
    def __init__(self, kind, base, n):
        self.kind, self.base, self.n = kind, base, n

    def __str__(self):
        return rng(self.kind, self.base, self.n)

    def names(self):
        return regs(self.kind, self.base, self.n)

    def sub(self, off, n):
        assert off + n <= self.n
        return R(self.kind, self.base + off, n)


def insert_waits(ops, pre_vm=()):
    out = []
    vm = list(pre_vm)
    lg = []
    max_vm = 0
    for op in ops:
        nv = nl = None
        if op.need_vm:
            idx = [vm.index(o) for o in op.need_vm if o in vm]
            if idx:
                nv = len(vm) - 1 - max(idx)
        if op.need_lg:
            idx = [lg.index(o) for o in op.need_lg if o in lg]
            if idx:
                nl = len(lg) - 1 - max(idx)
        if nv is not None or nl is not None:
            parts = []
            if nv is not None:
                nv = min(nv, 63)
                parts.append(f"vmcnt({nv})")
            if nl is not None:
                nl = min(nl, 15)
                parts.append(f"lgkmcnt({nl})")
            w = Op("s_waitcnt " + " ".join(parts), "wait")
            out.append(w)
            if nv is not None:
                k = len(vm) - nv
                for o in vm[:k]:
                    o.done_vm_at = len(out) - 1
                vm = vm[k:]
            if nl is not None:
                k = len(lg) - nl
                for o in lg[:k]:
                    o.done_lg_at = len(out) - 1
                lg = lg[k:]
        out.append(op)
        op.pos = len(out) - 1
        if op.kind == "vm":
            vm.append(op)
            max_vm = max(max_vm, len(vm))
        elif op.kind in ("dsr", "dsw"):
            lg.append(op)
        elif op.kind == "waitall":
            for o in vm:
                o.done_vm_at = op.pos
            for o in lg:
                o.done_lg_at = op.pos
            vm, lg = [], []
    assert max_vm <= 63, f"vmcnt overflow risk: {max_vm}"
    return out, max_vm


def check_regs(ops, pre_vm=()):
    pend = {}
    for o in pre_vm:
        for r in o.wr:
            pend[r] = o
    last = {}
    for i, op in enumerate(ops):
        for o in op.src + op.need_vm + op.need_lg:
            for r in o.wr & op.rd:
                assert last.get(r) is o, f"[{op.text}] expects {r} from [{o.text}] but sees [{last[r].text if r in last else None}]"
        for r in op.wr:
            last[r] = op
    for i, op in enumerate(ops):
        for r in op.rd | op.wr:
            p = pend.get(r)
            if p is not None and p is not op:
                done = p.done_vm_at if p.kind == "vm" else p.done_lg_at
                assert done is not None and done < i, f"reg {r} used by [{op.text}] before load [{p.text}] is waited"
                del pend[r]
        if op.kind in ("vm", "dsr"):
            for r in op.wr:
                pend[r] = op


def check_lds(ops, pre_vm=()):
    bars = [i for i, o in enumerate(ops) if o.kind == "bar"]

    def done_pos(o):
        return o.done_vm_at if o.kind == "vm" else o.done_lg_at

    def ordered(first, second_pos, private):
        d = done_pos(first)
        if d is None or d >= second_pos:
            return False
        if private:
            return True
        return any(d < b < second_pos for b in bars)

    writers, readers, cur = {}, {}, {}
    allops = list(pre_vm) + list(ops)
    for o in allops:
        for key in o.lds_w:
            writers.setdefault(key, []).append(o)
        for key in o.lds_r:
            readers.setdefault(key, []).append(o)
    for o in allops:
        pos = -1 if o in pre_vm else o.pos
        for blk, gen in o.lds_r:
            assert cur.get(blk) == gen, f"[{o.text}] reads {blk} gen {gen} but current is {cur.get(blk)}"
            for w in writers[(blk, gen)]:
                assert ordered(w, pos, o.private and w.private), f"RAW: [{o.text}] vs writer [{w.text}] of {blk}/{gen}"
        for blk, gen in o.lds_w:
            old = cur.get(blk)
            if old is not None and old != gen:
                for r in readers.get((blk, old), []):
                    assert ordered(r, pos, o.private and r.private), \
                        f"WAR: [{o.text}] ({blk}/{gen}) vs reader [{r.text}] of gen {old}"
                for w in writers[(blk, old)]:
                    assert ordered(w, pos, o.private and w.private), f"WAW: [{o.text}] vs [{w.text}]"
            cur[blk] = gen


def states(op):
    m = re.match(r"s_nop (\d+)", op.text)
    if m:
        return int(m.group(1)) + 1
    return 0 if op.kind == "label" else 1


def check_hazards(ops):
    n = len(ops)
    for i, p in enumerate(ops):
        dist = 0
        for j in range(i + 1, min(n, i + 24)):
            c = ops[j]
            need = 0
            if p.kind == "mfma":
                tab = {4: (8, 8, 6, 3), 8: (12, 12, 10, 7)}[p.passes]
                if c.kind == "mfma":
                    ab = c.rd - c.wr
                    if p.wr & ab:
                        need = tab[1]
                    elif p.wr & c.wr and p.wr != c.wr:
                        need = tab[2]
                elif c.kind in ("valu", "vm", "dsr", "dsw") and p.wr & (c.rd | c.wr):
                    need = tab[0]
            elif p.kind == "valu":
                if c.kind == "mfma" and p.wr & c.rd:
                    need = 2
                sg = {r for r in p.wr if r[0] == "s" or r == "vcc"}
                if sg & c.rd:
                    need = max(need, 5 if c.kind == "vm" else 2)
                if "readfirstlane" in c.text and p.wr & c.rd:
                    need = max(need, 1)
            elif p.kind == "vm" and "store" in p.text and ("x4" in p.text or "x3" in p.text):
                if c.kind in ("valu", "dsr", "vm") and (p.rd & c.wr):
                    need = 2
            elif p.kind == "salu" and "m0" in p.wr:
                if c.kind == "vm" and "m0" in c.rd:
                    need = 1
            assert dist >= need, f"hazard: [{p.text}] -> [{c.text}] has {dist} states, needs {need}"
            dist += states(c)
```

```python
import os, re, subprocess, sys, tempfile
sys.path.insert(0, os.path.dirname(os.path.abspath(__file__)))
from sched import Op, R, regs, insert_waits, check_regs, check_lds, check_hazards

NAME = "standalone__glu_gated_reglu__prompt_kernel"
M, D, F = 2048, 640, 1536
HS = 49152
FLAG_OFF = 0
H_OFF = 0x10000
STAMP_OFF = 0x1000000
WS_BYTES = 0x2000000

CFG = dict(stamps=0, aux_x="", aux_w="", aux_d="", aux_h="sc1", aux_o="", rot=1, warm=1, DH=8,
           spin=40000, epi_rate=3, pub4=(2, 10), pub5=(4, 4), xorder=1, spp=9, rd_delay=26, tag_at=11)

vX, vWg, vWu, vWd, vHs, vHl0 = 8, 9, 10, 11, 12, 13
vHl = (14, 15)
vPoll, vO, vFs, vZ = 16, 17, 18, 19
vXA = lambda win, k: 20 + 4 * win + k
vWA = lambda win: 28 + win
vDA = lambda t: 30 + t
vRW = lambda t: 34 + t
vRR = 38
vFlag = 40
vPD = (42, 44)
vPT = 46
vStamp = 47
vTag = 48
vPk = (52, 56)
vDB = lambda t: 60 + t
ACC = lambda a: R("v", 64 + 16 * a, 16)
Wreg = lambda ks: R("v", 128 + 4 * ks, 4) if ks < 32 else R("a", 224 + 4 * (ks - 32), 4)
WDreg = lambda i, t: R("a", 16 * i + 4 * t, 4)
XF = lambda p: R("a", 192 + 4 * (p % 8), 4)


def Hreg(u, i):
    k = (u % 4) * 12 + i
    return R("v", 128 + 4 * k, 4) if k < 32 else R("a", 192 + 4 * (k - 32), 4)


ACC2 = lambda u, t: R("v", 96 + 16 * (u % 2) + 4 * t, 4)
RT = lambda w: R("v", 64 + 4 * w, 4)

sWave = 3
SRD_X, SRD_G, SRD_U, SRD_D, SRD_O, SRD_WS, SRD_DBG = 8, 12, 16, 20, 24, 28, 32
sTab = 52
sW1k, sW4k = 60, 61
sKX = lambda t: 62 + t
sKD = lambda i: 72 + i
sHB = lambda u: 84 + u
sOB = lambda u: 90 + u
sFB = lambda u: 36 + u
sNeed = lambda u: 42 + u
sTagA, sTagB = 48, 49
sMask = 50
sT0, sT1, sT2, sT3 = 4, 5, 6, 7
sSpin = 96
sRole = 97
sStamp = 98
sT0stamp = 100
srd = lambda b: f"s[{b}:{b + 3}]"

SLOT = [0, 32768, 98304, 65536]
Z0, Z1 = 131072, 147456
RED = 0


def xunit_addr(n):
    return SLOT[(2 + n // 8) % 4] + (n % 8) * 4096


def blocks(addr, nbytes):
    return [f"L{a // 4096}" for a in range(addr, addr + nbytes, 4096)]


def salu(text, wr=(), rd=(), **k):
    return Op(text, "salu", wr=wr, rd=rd, **k)


def valu(text, wr=(), rd=(), **k):
    return Op(text, "valu", wr=wr, rd=rd, **k)


def dma(srdb, voff, soff, m0base_s, lds_addr, blk, gen, aux, private=False):
    a = salu(f"s_add_u32 m0, s{m0base_s}, {lds_addr}", wr=["m0"])
    aux = (aux + " ") if aux else ""
    b = Op(f"buffer_load_dwordx4 v{voff}, {srd(srdb)}, s{soff} offen {aux}lds", "vm",
           rd=["m0", f"v{voff}", f"s{soff}"], lds_w=[(blk, gen)], private=private)
    return a, b


class Stream:
    def __init__(self):
        self.mf, self.gap, self.head = [], [], []

    def add(self, op):
        self.mf.append(op)
        self.gap.append([])

    def put(self, g, *ops):
        (self.head if g < 0 else self.gap[g]).extend(ops)

    def flat(self):
        out = list(self.head)
        for m, g in zip(self.mf, self.gap):
            out.append(m)
            out.extend(g)
        return out


class Prog:
    def __init__(self, cfg, role, G, U):
        self.c, self.role, self.G, self.U = cfg, role, G, U
        self.ool = []
        self.nstamp = 0
        self.stamp_names = []
        self.wd_rds = {}

    def stamp(self, name):
        if not self.c["stamps"]:
            return []
        ops = []
        if self.nstamp:
            ops.append(valu(f"v_writelane_b32 v{vStamp}, s{sStamp}, {self.nstamp}"))
        self.nstamp += 1
        self.stamp_names.append(name)
        ops.append(Op(f"s_memtime s[{sStamp}:{sStamp + 1}]", "misc"))
        return ops

    def stage_pieces(self, t):
        c, base, out = self.c, SLOT[t % 4], []
        for p in range(2):
            pre = salu(f"s_mul_i32 s{sT0}, s{sKX(t)}, 1536", wr=[f"s{sT0}"]) if p == 0 else \
                salu(f"s_add_u32 s{sT0}, s{sT0}, 24576", wr=[f"s{sT0}"])
            for mat, (sr, vo) in enumerate(((SRD_G, vWg), (SRD_U, vWu))):
                a, b = dma(sr, vo, sT0, sT3, base + mat * 8192 + p * 1024, f"W{t % 4}", t, c["aux_w"])
                out.append([a, pre, b] if mat == 0 else [a, Op("s_nop 0", "misc"), b])
        for g in range(4):
            a, b = dma(SRD_X, vX, sT1, sW1k, base + 16384 + g * 4096, f"L{(base + 16384) // 4096 + g}", ("I", t), c["aux_x"])
            pre = salu(f"s_add_u32 s{sT1}, s{sKX(t)}, {g * 40960}", wr=[f"s{sT1}"])
            out.append([a, pre, b])
        for piece in out[:4]:
            piece[-1].lds_w = [(k, ("I", t)) for k in blocks(base, 16384)]
        return out

    def xunit_piece(self, n):
        g, t = 4 + n // 10, n % 10
        addr = xunit_addr(self.xslot[n])
        a, b = dma(SRD_X, vX, sT1, sW1k, addr, f"L{addr // 4096}", ("S", n), self.c["aux_x"])
        pre = salu(f"s_add_u32 s{sT1}, s{sKX(t)}, {g * 40960}", wr=[f"s{sT1}"])
        return [a, pre, b]

    def wd_pieces(self, i, buf):
        out = []
        for p in range(4):
            pre = salu(f"s_mul_i32 s{sT2}, s{sKD(i)}, 40", wr=[f"s{sT2}"]) if p == 0 else \
                salu(f"s_add_u32 s{sT2}, s{sT2}, 10240", wr=[f"s{sT2}"])
            a, b = dma(SRD_D, vWd, sT2, sW4k, buf + p * 1024, None, None, self.c["aux_d"], private=True)
            b.lds_w = [(k, ("D", i)) for k in blocks(buf, 16384)]
            out.append([a, pre, b])
        return out

    def wd_reads(self, i, buf, loads):
        ops = []
        for t in range(4):
            for h in range(2):
                va, off = (vDA(t), buf - 98304) if buf >= 98304 else (vDB(t), buf - 32768)
                d = WDreg(i, t).sub(2 * h, 2)
                ops.append(Op(f"ds_read_b64_tr_b16 {d}, v{va} offset:{off + 1024 * h}", "dsr", need_vm=loads,
                              rd=[f"v{va}"], wr=d.names(), lds_r=[(k, ("D", i)) for k in blocks(buf, 16384)],
                              private=True))
        return ops

    def epilogue(self, g, acc):
        a, pk = ACC(acc), vPk[g % 2]
        ops = []
        for r in range(8):
            x = a.base + r
            ops.append(valu(f"v_max_f32 v{x}, 0, v{x}", wr=[f"v{x}"], rd=[f"v{x}"]))
        for r in range(8):
            x = a.base + r
            ops.append(valu(f"v_mul_f32 v{x}, v{x}, v{x + 8}", wr=[f"v{x}"], rd=[f"v{x}", f"v{x + 8}"]))
        for r in range(4):
            x = a.base + 2 * r
            ops.append(valu(f"v_cvt_pk_bf16_f32 v{pk + r}, v{x}, v{x + 1}", wr=[f"v{pk + r}"], rd=[f"v{x}", f"v{x + 1}"]))
        ops.append(salu(f"s_mov_b32 s{sMask}, {2 * g * HS}", wr=[f"s{sMask}"]))
        st = Op(f"buffer_store_dwordx4 v[{pk}:{pk + 3}], v{vHs}, {srd(SRD_WS)}, s{sMask} offen sc1", "vm",
                rd=regs("v", pk, 4) + [f"v{vHs}", f"s{sMask}"])
        ops.append(st)
        return ops, st

    def publish(self, stores, first):
        ops = []
        if not first:
            ops.append(valu(f"v_add_u32 v{vFlag}, 1, v{vFlag}", wr=[f"v{vFlag}"], rd=[f"v{vFlag}"]))
        ops.append(salu("s_mov_b64 exec, 1", need_vm=stores))
        ops.append(Op(f"buffer_store_dwordx2 v[{vFlag}:{vFlag + 1}], v{vFs}, {srd(SRD_WS)}, 0 offen sc1", "vm",
                      rd=[f"v{vFlag}", f"v{vFlag + 1}", f"v{vFs}"]))
        ops.append(salu("s_mov_b64 exec, -1"))
        return ops

    def tag_slow(self, lab):
        self.ool.append(f"""{lab}:
    s_mov_b32 s{sSpin}, 0
{lab}_loop:
    buffer_load_dwordx2 v[{vTag}:{vTag + 1}], v{vZ}, {srd(SRD_DBG)}, 0 offen sc1
    s_add_u32 s{sSpin}, s{sSpin}, 1
    s_waitcnt vmcnt(0)
    v_readfirstlane_b32 s{sTagA}, v{vTag}
    v_readfirstlane_b32 s{sTagB}, v{vTag + 1}
    s_nop 3
    s_cmp_lg_u32 s{sTagA}, 0
    s_cbranch_scc1 {lab}_back
    s_cmp_lt_u32 s{sSpin}, {self.c['spin']}
    s_cbranch_scc1 {lab}_loop
    s_branch {lab}_back""")

    def tag_use(self):
        ops = [salu(f"s_and_b32 s{sTagA}, s{sTagA}, -8", wr=[f"s{sTagA}"]),
               valu(f"v_mov_b32 v{vFlag + 1}, s{sTagB}", wr=[f"v{vFlag + 1}"]),
               salu(f"s_add_u32 s{sMask}, s{sTagA}, 4", wr=[f"s{sMask}"]),
               valu(f"v_mov_b32 v{vFlag}, s{sMask}", wr=[f"v{vFlag}"])]
        for u in range(self.U):
            ops.append(salu(f"s_add_u32 s{sNeed(u)}, s{sNeed(u)}, s{sTagA}", wr=[f"s{sNeed(u)}"]))
        return ops

    def poll(self, u):
        d = vPD[u % 2]
        return Op(f"buffer_load_dwordx2 v[{d}:{d + 1}], v{vPoll}, {srd(SRD_WS)}, s{sFB(u)} offen sc1", "vm",
                  rd=[f"v{vPoll}"], wr=[f"v{d}", f"v{d + 1}"])

    def check(self, u, pollop):
        d, lab = vPD[u % 2], f"L_{self.role}_chk{u}"
        body = [f"v_subrev_u32 v{vPT}, s{sNeed(u)}, v{d}",
                f"v_cmp_eq_u32 s[{sMask}:{sMask + 1}], s{sTagB}, v{d + 1}",
                f"v_cmp_gt_u32 vcc, 8, v{vPT}"]
        ops = [valu(body[0], wr=[f"v{vPT}"], rd=[f"v{d}"], need_vm=[pollop]),
               valu(body[1], wr=[f"s{sMask}", f"s{sMask + 1}"], rd=[f"v{d + 1}"]),
               valu(body[2], wr=["vcc"], rd=[f"v{vPT}"]),
               valu(f"v_add_u32 v{vHl[u % 2]}, s{sHB(u)}, v{vHl0}", wr=[f"v{vHl[u % 2]}"], rd=[f"v{vHl0}"]),
               Op("s_nop 0", "misc"),
               salu(f"s_and_b64 vcc, vcc, s[{sMask}:{sMask + 1}]", rd=["vcc", f"s{sMask}"], wr=["vcc"]),
               salu("s_cmp_eq_u64 vcc, exec"),
               salu(f"s_cbranch_scc0 {lab}"),
               Op(f"{lab}_back:", "label")]
        self.ool.append(f"""{lab}:
    s_mov_b32 s{sSpin}, 0
{lab}_loop:
    buffer_load_dwordx2 v[{d}:{d + 1}], v{vPoll}, {srd(SRD_WS)}, s{sFB(u)} offen sc1
    s_add_u32 s{sSpin}, s{sSpin}, 1
    s_waitcnt vmcnt(0)
    {body[0]}
    {body[1]}
    {body[2]}
    s_nop 1
    s_and_b64 vcc, vcc, s[{sMask}:{sMask + 1}]
    s_cmp_eq_u64 vcc, exec
    s_cbranch_scc1 {lab}_back
    s_cmp_lt_u32 s{sSpin}, {self.c['spin']}
    s_cbranch_scc1 {lab}_loop
    s_branch {lab}_back""")
        return ops

    def hload(self, u, i):
        d, aux = Hreg(u, i), self.c["aux_h"]
        return Op(f"buffer_load_dwordx4 {d}, v{vHl[u % 2]}, {srd(SRD_WS)}, s{sKD(i)} offen {aux}", "vm",
                  rd=[f"v{vHl[u % 2]}"], wr=d.names())

    def red_write(self, u):
        ops = []
        for t in range(4):
            s = ACC2(u, t)
            ops.append(Op(f"ds_write_b128 v{vRW(t)}, {s} offset:{RED + 16384 * (u % 2)}", "dsw",
                          rd=s.names() + [f"v{vRW(t)}"],
                          lds_w=[(k, ("R", u)) for k in blocks(RED + 16384 * (u % 2), 16384)]))
        return ops

    def red_read(self, u):
        ops = []
        for w in range(4):
            d = RT(w)
            ops.append(Op(f"ds_read_b128 {d}, v{vRR} offset:{RED + 16384 * (u % 2) + 4096 * w}", "dsr",
                          rd=[f"v{vRR}"], wr=d.names(),
                          lds_r=[(k, ("R", u)) for k in blocks(RED + 16384 * (u % 2), 16384)]))
        return ops

    def red_finish(self, u, reads):
        ops = []
        b = RT(0).base
        for (x, y, need) in ((0, 4, reads[:2]), (8, 12, reads[2:]), (0, 8, [])):
            for r in range(4):
                ops.append(valu(f"v_add_f32 v{b + x + r}, v{b + x + r}, v{b + y + r}", wr=[f"v{b + x + r}"],
                                rd=[f"v{b + x + r}", f"v{b + y + r}"], need_lg=need))
        pk = vPk[0]
        for r in range(2):
            ops.append(valu(f"v_cvt_pk_bf16_f32 v{pk + r}, v{b + 2 * r}, v{b + 2 * r + 1}", wr=[f"v{pk + r}"],
                            rd=[f"v{b + 2 * r}", f"v{b + 2 * r + 1}"]))
        ops.append(Op(f"buffer_store_dwordx2 v[{pk}:{pk + 1}], v{vO}, {srd(SRD_O)}, s{sOB(u)} offen {self.c['aux_o']}",
                      "vm", rd=[f"v{pk}", f"v{pk + 1}", f"v{vO}"]))
        return ops

    def build(self, pre_stage):
        c, G, U = self.c, self.G, self.U
        ops = []
        wd_loads, wd_buf, wd_done = {}, {}, set()
        tail_wd = []
        late_pub = []
        if G:
            ops_p1, tail_wd, late_pub = self.build_p1(pre_stage, wd_loads, wd_buf, wd_done)
            ops += ops_p1
        else:
            ops += self.build_idle(wd_loads, wd_buf, wd_done)
        ops += self.build_p2(tail_wd, late_pub, wd_loads, wd_buf, wd_done)
        return ops

    def build_p1(self, pre_stage, wd_loads, wd_buf, wd_done):
        c, G = self.c, self.G
        nS = 2 * (G - 4)
        nx = 10 * (G - 4)
        st = Stream()
        start = [16 * t for t in range(10)] + [160 + 20 * j for j in range(nS)]
        S = lambda j, g=0: 160 + 20 * j + g
        I = lambda t, g=0: 16 * t + g
        ntot = 160 + 20 * nS
        order = list(range(nx))
        if c["xorder"]:
            first = [10 * g + t for g in range(G - 4) for t in (0, 1)]
            order = first + [n for n in order if n not in first]
        self.xslot = {}
        for k0 in range(0, nx, 8):
            for k, n in enumerate(sorted(order[k0:k0 + 8])):
                self.xslot[n] = k0 + k
        info = []
        for t in range(10):
            base = SLOT[t % 4] + 16384
            seq = [(k, g) for k in range(4) for g in range(4)] if t < 9 else [(k, g) for g in range(4) for k in range(4)]
            for k, g in seq:
                info.append((4 * t + k, g, base + 4096 * g, k, ("I", t), 4 * t + k == 0))
        accof = {4: 0, 5: 1, 6: 0}
        for j in range(nS):
            g = 4 + j // 2
            for cc in range(5):
                t = 5 * (j % 2) + cc
                n = 10 * (g - 4) + t
                for k in range(4):
                    info.append((4 * t + k, accof[g], xunit_addr(self.xslot[n]), k, ("S", n), 4 * t + k == 0))
        xrd, wrd = [], {}
        for p, (ks, a, addr, k, key, first) in enumerate(info):
            win, off = addr // 65536, addr % 65536
            d = XF(p)
            xrd.append(Op(f"ds_read_b128 {d}, v{vXA(win, k)} offset:{off}", "dsr", rd=[f"v{vXA(win, k)}"],
                          wr=d.names(), lds_r=[(f"L{addr // 4096}", key)]))
        for ks in range(40):
            t, k = ks // 4, ks % 4
            base = SLOT[t % 4]
            win, off = base // 65536, base % 65536
            wrd[ks] = []
            for h in range(2):
                d = Wreg(ks).sub(2 * h, 2)
                wrd[ks].append(Op(f"ds_read_b64_tr_b16 {d}, v{vWA(win)} offset:{off + 2048 * k + 512 * h}", "dsr",
                                  rd=[f"v{vWA(win)}"], wr=d.names(),
                                  lds_r=[(b, ("I", t)) for b in blocks(base, 16384)]))
        for p, (ks, a, addr, k, key, first) in enumerate(info):
            acc, w, x = ACC(a), Wreg(ks), XF(p)
            srcc = "0" if first else str(acc)
            st.add(Op(f"v_mfma_f32_32x32x16_bf16 {acc}, {w}, {x}, {srcc}", "mfma", passes=8,
                      rd=w.names() + x.names() + ([] if first else acc.names()), wr=acc.names(),
                      need_lg=[xrd[p]] + (wrd[ks] if p < 160 else []), src=wrd[ks]))
        stage = {0: pre_stage[0], 1: pre_stage[1]}
        for t in range(2, 10):
            stage[t] = self.stage_pieces(t)
        xp = {n: self.xunit_piece(n) for n in range(nx)}
        bgap = lambda s: start[s] - 5
        wdp = {}
        self.sched_p1(st, stage, xp, order, wdp, wd_loads, wd_buf, wd_done, start, bgap, ntot, nS)
        bar_first_read = {}
        for s in range(len(start)):
            if s < 10:
                need = [pc[-1] for pc in stage[s]]
            else:
                j = s - 10
                need = [xp[10 * (j // 2) + 5 * (j % 2) + cc][-1] for cc in range(5)]
            b = Op("s_barrier", "bar", need_vm=need)
            lst = st.head if s == 0 else st.gap[bgap(s)]
            lst[0:0] = [b] + self.stamp(f"B{s}") if s else []
            if s == 0:
                st.head.extend([b] + self.stamp("B0"))
        for p in range(ntot):
            s = max(k for k in range(len(start)) if start[k] <= p)
            g = max(p - 6, bgap(s))
            ks = info[p][0]
            rd = []
            if p < 160 and ks in wrd and not any(info[q][0] == ks for q in range(start[s], p)):
                rd += wrd[ks]
            rd.append(xrd[p])
            if s == 0 and g < 0:
                st.head.extend(rd)
            else:
                lst = st.gap[g]
                k = 0
                while k < len(lst) and (lst[k].kind in ("bar", "dsr") or "s_memtime" in lst[k].text or "writelane" in lst[k].text):
                    k += 1
                lst[k:k] = rd
        st.put(bgap(c["tag_at"] - 1) + 2, Op(f"s_load_dwordx2 s[{sTagA}:{sTagB}], s[{SRD_DBG}:{SRD_DBG + 1}], 0", "misc"))
        lab = f"L_{self.role}_tag"
        self.tag_slow(lab)
        g = bgap(c["tag_at"])
        k = [o.kind for o in st.gap[g]].index("bar")
        st.gap[g][k:k] = [Op("s_waitcnt lgkmcnt(0)", "waitlg")]
        st.put(g + 1, salu(f"s_cmp_eq_u32 s{sTagA}, 0"), salu(f"s_cbranch_scc1 {lab}"), Op(f"{lab}_back:", "label"))
        tu = self.tag_use()
        for k, o in enumerate(tu):
            st.put(g + 2 + k // 3, o)
        rate = c["epi_rate"]
        stores = {}

        def place_epi(g, acc, g0):
            e, s = self.epilogue(g, acc)
            stores[g] = s
            for k, o in enumerate(e):
                st.put(g0 + k // rate, o)
            return g0 + (len(e) - 1) // rate + 1
        nxt = place_epi(0, 0, I(9, 6))
        assert nxt <= 160, nxt
        for g in (1, 2, 3):
            nxt = place_epi(g, g, max(nxt, I(9, 4 * g + 6)))
        assert nxt <= S(2), "acc1 must be free before group 5"
        for g in range(4, G - 1):
            place_epi(g, accof[g], S(2 * (g - 3), 2))
        pubs = [([stores[g] for g in range(4)], c["pub4"])]
        if G == 7:
            pubs.append(([stores[4]], c["pub5"]))
        for k, (sts, (j, gg)) in enumerate(pubs):
            st.put(min(S(j, gg), ntot - 1), *self.publish(sts, k == 0))
        out = st.flat()
        e, s_last = self.epilogue(G - 1, accof[G - 1])
        rest = list(self.tail_pieces)
        out += self.stamp("P1end")
        lead = rest[:4]
        rest = rest[4:]
        for pc in lead:
            out += pc
        if len(lead) < 4:
            out.append(Op("s_nop 11", "misc"))
        out += e
        out += self.publish([stores[G - 2]], False)
        return out, rest, [s_last]

    def sched_p1(self, st, stage, xp, order, wdp, wd_loads, wd_buf, wd_done, start, bgap, ntot, nS):
        G = self.G
        for t in range(2, 10):
            lo = bgap(t - 2) + 1 if t > 2 else 0
            hi = bgap(t - 1)
            for k, pc in enumerate(stage[t]):
                st.put(lo + (k * (hi - lo)) // 8, *pc)
        avail = {Z0: 0, Z1: 0}
        for kb in (0, 1, 2, 3, 6, 7):
            users = [n for n, s in self.xslot.items() if 4 * kb <= s < 4 * kb + 4]
            last = max([10 + 2 * (n // 10) + (n % 10) // 5 for n in users] + [6 + kb // 2])
            avail[xunit_addr(4 * kb)] = bgap(last + 2) + 1 if last + 2 < len(start) else ntot
        pos = float(bgap(8) + 1)
        step = lambda q: 2.0 if q < 160 else 20.0 / self.c["spp"]
        for k, n in enumerate(order):
            pos = max(pos, bgap(8 + k // 8) + 1)
            st.put(int(pos), *xp[n])
            pos += step(pos)
        self.tail_pieces = []
        rdfree = 0
        for i in range(12):
            buf = min(avail, key=lambda b: (max(avail[b], pos), avail[b]))
            wd_buf[i] = buf
            wdp[i] = self.wd_pieces(i, buf)
            wd_loads[i] = [pc[-1] for pc in wdp[i]]
            pos = max(pos, avail[buf])
            for pc in wdp[i]:
                if pos >= ntot:
                    self.tail_pieces.append(pc)
                else:
                    st.put(int(pos), *pc)
                    pos += step(pos)
            g = max(int(pos) + self.c["rd_delay"], rdfree)
            if g + 4 < ntot:
                rds = self.wd_reads(i, buf, wd_loads[i])
                for k, o in enumerate(rds):
                    st.put(g + k // 2, o)
                wd_done.add(i)
                self.wd_rds[i] = rds
                rdfree = g + 4
                avail[buf] = g + 7
            else:
                avail[buf] = ntot + 1 + i
        for i in range(12):
            prev = [q for q in range(i) if wd_buf[q] == wd_buf[i]]
            if prev and prev[-1] in self.wd_rds:
                wd_loads[i][0].need_lg = list(self.wd_rds[prev[-1]])

    def build_idle(self, wd_loads, wd_buf, wd_done):
        N = lambda k: xunit_addr(4 * k)
        bufs = [Z0, Z1, N(0), N(1)]
        out = []
        pcs = {}
        for i in range(12):
            wd_buf[i] = bufs[i % 4]
            pcs[i] = self.wd_pieces(i, wd_buf[i])
            wd_loads[i] = [pc[-1] for pc in pcs[i]]
        for i in range(3):
            for pc in pcs[i]:
                out += pc
        for i in range(12):
            rds = self.wd_reads(i, wd_buf[i], wd_loads[i])
            out += rds
            wd_done.add(i)
            self.wd_rds[i] = rds
            if i + 3 < 12:
                prev = self.last_rds if i else []
                pcs[i + 3][0][-1].need_lg = prev
                for pc in pcs[i + 3]:
                    out += pc
            self.last_rds = rds
        lab = f"L_{self.role}_tag"
        self.tag_slow(lab)
        out.append(Op("s_waitcnt vmcnt(0) lgkmcnt(0)", "waitall"))
        out.append(salu(f"s_branch {lab}"))
        out.append(Op(f"{lab}_back:", "label"))
        out += self.tag_use()
        out += self.stamp("Dready")
        return out

    def build_p2(self, tail_wd, late_pub, wd_loads, wd_buf, wd_done):
        c, U, DH = self.c, self.U, self.c["DH"]
        out = []
        H = {(u, i): self.hload(u, i) for u in range(U) for i in range(12)}
        polls = {u: self.poll(u) for u in range(U)}
        wdr = {}
        pending = [i for i in range(12) if i not in wd_done]
        issued = lambda i: all(not any(pc[-1] is l for pc in tail_wd) for l in wd_loads[i])

        def reads(i):
            wdr[i] = self.wd_reads(i, wd_buf[i], wd_loads[i])
            pending.remove(i)
            return wdr[i]
        if self.G:
            out.append(Op("s_barrier", "bar", need_lg=self.all_dsr))
        tail_wd = list(tail_wd)
        npoll = max(0, len(tail_wd) - DH)
        k = 0
        while tail_wd:
            pc = tail_wd.pop(0)
            i = [q for q in range(12) if pc[-1] in wd_loads[q]][0]
            if pc[-1] is wd_loads[i][0]:
                prev = [q for q in range(i) if wd_buf[q] == wd_buf[i]]
                while prev and prev[-1] in pending:
                    out += reads(pending[0])
                if prev and prev[-1] in wdr:
                    pc[-1].need_lg = wdr[prev[-1]]
            if k == npoll:
                out.append(polls[0])
            out += pc
            k += 1
        if k <= npoll:
            out.append(polls[0])
        while len(pending) > 2:
            out += reads(pending[0])
        if self.role == "A":
            lab = "L_A_noP2"
            out.append(salu(f"s_cmp_eq_u32 s{sRole}, 4"))
            out.append(salu(f"s_cbranch_scc1 {lab}"))
            txt = "\n    ".join(o.text for o in self.publish([], False))
            self.ool.append(f"{lab}:\n    s_waitcnt vmcnt(0)\n    {txt}\n    s_branch L_{self.role}_end")
        out += self.check(0, polls[0])
        out += self.stamp("chk0")
        for n in range(DH):
            if n == 12 - DH and U > 1:
                out.append(polls[1])
            out.append(H[(0, n)])
            if n % 4 == 3 and pending:
                out += reads(pending[0])
        while pending:
            out += reads(pending[0])
        if late_pub:
            e = self.publish(late_pub, False)
            out += e
        st = Stream()
        allwd = [o for i in wdr for o in wdr[i]]
        for u in range(U):
            for i in range(12):
                for t in range(4):
                    acc, w, h = ACC2(u, t), WDreg(i, t), Hreg(u, i)
                    srcc = "0" if i == 0 else str(acc)
                    st.add(Op(f"v_mfma_f32_16x16x32_bf16 {acc}, {w}, {h}, {srcc}", "mfma", passes=4,
                              rd=w.names() + h.names() + ([] if i == 0 else acc.names()), wr=acc.names(),
                              need_vm=[H[(u, i)]], need_lg=wdr.get(i, []) if u == 0 else [],
                              src=wdr.get(i, self.wd_rds.get(i, []))))
        for n in range(DH, 12 * U):
            u, i = divmod(n, 12)
            g = 4 * (n - DH)
            if i == 0:
                ck = self.check(u, polls[u])
                st.put(g - 2, *ck[:2])
                st.put(g - 1, *ck[2:4])
                st.put(g, *ck[5:])
                st.put(g, *self.stamp(f"chk{u}"))
            if (n + DH) % 12 == 0 and (n + DH) // 12 < U:
                st.put(g + 1, polls[(n + DH) // 12])
            st.put(g + 1, H[(u, i)])
        for u in range(U - 1):
            g0 = 48 * (u + 1)
            wr_ = self.red_write(u)
            for k, o in enumerate(wr_):
                st.put(g0 + 2 + 2 * k, o)
            rd_ = self.red_read(u)
            st.put(g0 + 14, Op("s_barrier", "bar", need_lg=wr_))
            for k, o in enumerate(rd_):
                st.put(g0 + 14 + k, o)
            for k, o in enumerate(self.red_finish(u, rd_)):
                st.put(g0 + 22 + k, o)
        out += st.flat()
        out += self.stamp("P2mf")
        u = U - 1
        out.append(Op("s_nop 4", "misc"))
        wr_ = self.red_write(u)
        out += wr_
        out.append(Op("s_barrier", "bar", need_lg=wr_))
        rd_ = self.red_read(u)
        out += rd_
        out += self.red_finish(u, rd_)
        out += self.stamp("end")
        return out


SIZES = [7, 6, 7, 6, 6]
STARTS = [0, 7, 13, 20, 26]


def g16_source(g16):
    g32 = g16 // 2
    mh, r = divmod(g32, 32)
    mt = max(k for k in range(5) if STARTS[k] <= r)
    j = r - STARTS[mt]
    return 5 * mh + mt, (4 if j < 4 else j + 1)


def make_table(cfg):
    tab = [[0] * 8 for _ in range(256)]
    six = [i for i in range(30) if SIZES[i // 6] == 6]
    seven = [i for i in range(30) if SIZES[i // 6] == 7]
    sets = [six[0:5], six[5:8] + [30, 31], six[8:13], six[13:18], seven[0:5], seven[5:10]]
    nu = [6, 6, 5, 5, 5, 5]
    t0 = [0, 0, 0, 0, 800, 800]
    for x in range(8):
        p, dh = x >> 1, x & 1
        units = sorted(range(32 * p, 32 * p + 32), key=lambda g: (g16_source(g)[1], g))
        slots = sorted((t0[c] + 872 * i, c, i) for c in range(6) for i in range(nu[c]))
        lst = {c: [None] * nu[c] for c in range(6)}
        for g, (_, c, i) in zip(units, slots):
            lst[c][i] = g
        for c in range(6):
            for dd, idx in enumerate(sets[c]):
                role = 3 if idx >= 30 else (0 if idx in seven else (2 if nu[c] == 6 else 1))
                rho = (2 * c + [0, 2, 5, 7, 10][dd]) % 12 if cfg["rot"] else 0
                w = tab[8 * idx + x]
                w[0] = (5 * dh + dd) | rho << 8 | role << 16
                for i, g in enumerate(lst[c]):
                    T, cnt = g16_source(g)
                    w[1 + i] = g | T << 8 | cnt << 16
        for idx in seven[10:]:
            tab[8 * idx + x][0] = 4 << 16
    return tab


def prologue(cfg, pre):
    L = []
    a = lambda s: L.extend("    " + x.strip() if not x.strip().endswith(":") else x.strip() for x in s.strip().split("\n"))
    if cfg["stamps"]:
        a(f"s_memtime s[{sT0stamp}:{sT0stamp + 1}]\ns_memrealtime s[{sStamp}:{sStamp + 1}]")
    a(f"""
    s_cmp_ge_u32 s2, 256
    s_cbranch_scc1 L_exit
    s_load_dwordx8 s[36:43], s[0:1], 0
    s_load_dwordx4 s[44:47], s[0:1], 32
    s_load_dwordx2 s[48:49], s[0:1], 48
    v_lshrrev_b32 v1, 6, v0
    v_and_b32 v0, 63, v0
    s_and_b32 s50, s2, 7
    v_readfirstlane_b32 s{sWave}, v1
    s_lshr_b32 s51, s2, 3
    s_mul_i32 s52, s51, 43
    s_lshr_b32 s52, s52, 8
    s_mul_i32 s53, s52, 6
    s_sub_u32 s53, s51, s53
    s_lshr_b32 s54, s50, 2
    s_and_b32 s55, s50, 3
    s_mul_i32 s56, s55, 6
    s_add_u32 s56, s56, s53
    s_mul_i32 s57, s52, 13
    s_add_u32 s57, s57, 1
    s_lshr_b32 s57, s57, 1
    s_lshl_b32 s58, s54, 5
    s_add_u32 s57, s57, s58
    s_mul_i32 s58, s54, 5
    s_add_u32 s58, s58, s52""")
    if cfg["rot"]:
        a("""
        s_mul_i32 s59, s53, 5
        s_add_u32 s59, s59, 1
        s_mul_i32 s59, s59, 43
        s_lshr_b32 s59, s59, 7
        s_lshl_b32 s4, s52, 1
        s_add_u32 s59, s59, s4
        s_add_u32 s59, s59, s54
        s_add_u32 s59, s59, s55
        s_sub_u32 s4, s59, 10
        s_cmp_ge_u32 s59, 10
        s_cselect_b32 s59, s4, s59
        s_sub_u32 s4, s59, 10
        s_cmp_ge_u32 s59, 10
        s_cselect_b32 s59, s4, s59""")
    else:
        a("s_mov_b32 s59, 0")
    a(f"""
    s_lshl_b32 s{sKX(0)}, s59, 7
    s_add_u32 s4, s{sKX(0)}, 128
    s_cmp_eq_u32 s4, 1280
    s_cselect_b32 s{sKX(1)}, 0, s4
    s_lshl_b32 s{sW1k}, s{sWave}, 10
    s_lshl_b32 s{sW4k}, s{sWave}, 12
    s_lshl_b32 s{sT3}, s{sWave}, 11
    v_lshrrev_b32 v2, 3, v0
    v_and_b32 v3, 7, v0
    v_lshrrev_b32 v4, 4, v0
    v_lshl_add_u32 v5, v1, 3, v2
    v_mul_u32_u24 v5, 1280, v5
    v_lshl_add_u32 v6, v1, 2, v4
    v_and_b32 v6, 7, v6
    v_xor_b32 v6, v6, v3
    v_lshl_add_u32 v5, v6, 4, v5
    s_mul_i32 s4, s57, 40960
    v_add_u32 v{vX}, s4, v5
    v_lshl_add_u32 v5, v1, 4, v2
    v_mul_u32_u24 v5, 3072, v5
    v_and_b32 v6, 1, v4
    v_lshlrev_b32 v6, 1, v6
    v_xor_b32 v6, v6, v3
    v_lshl_add_u32 v5, v6, 4, v5
    s_lshl_b32 s4, s56, 7
    v_add_u32 v{vWg}, s4, v5
    v_xor_b32 v{vWu}, 64, v{vWg}
    s_mov_b32 s{SRD_X + 2}, {M * D * 2}
    s_mov_b32 s{SRD_X + 3}, 0x20000
    s_mov_b32 s{SRD_G + 2}, {D * F * 2}
    s_mov_b32 s{SRD_G + 3}, 0x20000
    s_mov_b32 s{SRD_U + 2}, {D * F * 2}
    s_mov_b32 s{SRD_U + 3}, 0x20000
    s_mov_b32 s{SRD_D + 2}, {D * F * 2}
    s_mov_b32 s{SRD_D + 3}, 0x20000
    s_mov_b32 s{SRD_O + 2}, {M * D * 2}
    s_mov_b32 s{SRD_O + 3}, 0x20000
    s_mov_b32 s{SRD_WS + 2}, {WS_BYTES}
    s_mov_b32 s{SRD_WS + 3}, 0x20000
    s_mov_b32 s{SRD_DBG + 2}, 256
    s_mov_b32 s{SRD_DBG + 3}, 0x20000
    s_waitcnt lgkmcnt(0)
    s_mov_b64 s[{SRD_X}:{SRD_X + 1}], s[36:37]
    s_mov_b64 s[{SRD_G}:{SRD_G + 1}], s[38:39]
    s_mov_b64 s[{SRD_U}:{SRD_U + 1}], s[40:41]
    s_mov_b64 s[{SRD_D}:{SRD_D + 1}], s[42:43]
    s_mov_b64 s[{SRD_O}:{SRD_O + 1}], s[44:45]
    s_mov_b64 s[{SRD_DBG}:{SRD_DBG + 1}], s[46:47]
    s_mov_b64 s[{SRD_WS}:{SRD_WS + 1}], s[48:49]
    s_getpc_b64 s[36:37]
L_pc:
    s_lshl_b32 s38, s2, 5
    s_add_u32 s36, s36, s38
    s_addc_u32 s37, s37, 0
    s_add_u32 s36, s36, L_table-L_pc
    s_addc_u32 s37, s37, 0
    s_mov_b32 s44, s56
    s_mov_b32 s45, s57
    s_mov_b32 s46, s58
    s_load_dwordx8 s[{sTab}:{sTab + 7}], s[36:37], 0
    s_cmp_ge_u32 s51, 30
    s_cbranch_scc1 L_idle""")
    if cfg["stamps"]:
        a(f"s_memtime s[84:85]")
    for t in range(2):
        for pc in pre[t]:
            for o in pc:
                a(o.text)
    a("L_noissue:")
    if cfg["stamps"]:
        a(f"s_memtime s[86:87]")
    for t in range(2, 10):
        a(f"s_add_u32 s36, s{sKX(t - 1)}, 128\ns_cmp_eq_u32 s36, 1280\ns_cselect_b32 s{sKX(t)}, 0, s36")
    a(f"""
    v_mul_u32_u24 v5, 384, v1
    v_add_u32 v5, v5, v2
    v_mul_u32_u24 v5, 1280, v5
    v_lshlrev_b32 v6, 1, v4
    v_xor_b32 v6, v6, v3
    v_lshl_add_u32 v{vWd}, v6, 4, v5
    v_and_b32 v5, 31, v0
    v_lshrrev_b32 v6, 5, v0
    v_bfe_u32 v7, v0, 1, 3
    v_xor_b32 v7, v7, v6
    v_lshlrev_b32 v7, 4, v7
    v_lshl_add_u32 v{vXA(0, 0)}, v5, 7, v7
    v_xor_b32 v{vXA(0, 1)}, 32, v{vXA(0, 0)}
    v_xor_b32 v{vXA(0, 2)}, 64, v{vXA(0, 0)}
    v_xor_b32 v{vXA(0, 3)}, 0x60, v{vXA(0, 0)}""")
    for k in range(4):
        a(f"v_add_u32 v{vXA(1, k)}, 0x10000, v{vXA(0, k)}")
    a(f"""
    v_and_b32 v5, 1, v4
    v_bfe_u32 v7, v0, 2, 2
    v_lshl_add_u32 v50, v6, 3, v7
    v_lshlrev_b32 v50, 7, v50
    v_lshl_add_u32 v50, v5, 13, v50
    v_bfe_u32 v51, v0, 3, 1
    v_lshl_add_u32 v52, v5, 1, v51
    v_xor_b32 v53, v52, v1
    v_lshl_add_u32 v50, v53, 5, v50
    v_and_b32 v53, 3, v0
    v_lshl_add_u32 v{vWA(0)}, v53, 3, v50
    v_add_u32 v{vWA(1)}, 0x10000, v{vWA(0)}
    v_lshlrev_b32 v50, 4, v6
    v_lshl_add_u32 v50, v5, 2, v50
    v_add_u32 v50, v50, v7
    v_lshlrev_b32 v50, 7, v50
    v_lshl_add_u32 v50, v52, 5, v50
    v_lshl_add_u32 v50, v53, 3, v50
    v_lshl_add_u32 v50, v1, 12, v50""")
    for t in range(4):
        a(f"v_xor_b32 v54, {32 * t}, v50\nv_add_u32 v{vDA(t)}, 0x18000, v54\nv_add_u32 v{vDB(t)}, 0x8000, v54")
    a(f"""
    v_and_b32 v7, 15, v0
    s_mov_b32 s36, {HS}
    v_mul_lo_u32 v50, s36, v5
    v_lshrrev_b32 v51, 1, v1
    v_lshl_add_u32 v50, v51, 10, v50
    v_and_b32 v51, 1, v1
    v_lshl_add_u32 v51, v51, 1, v6
    v_lshl_add_u32 v50, v51, 8, v50
    v_lshl_add_u32 v50, v7, 4, v50
    s_mul_i32 s36, s45, {2 * HS}
    s_lshl_b32 s37, s44, 11
    s_add_u32 s36, s36, s37
    s_add_u32 s36, s36, {H_OFF}
    v_add_u32 v{vHs}, s36, v50
    v_mul_u32_u24 v50, 12288, v1
    v_lshl_add_u32 v50, v0, 4, v50
    v_add_u32 v{vHl0}, {H_OFF}, v50
    v_mov_b32 v{vHl[0]}, v{vHl0}
    v_mov_b32 v{vHl[1]}, v{vHl0}
    v_min_u32 v50, 23, v0
    v_lshrrev_b32 v51, 2, v50
    v_mul_u32_u24 v52, 6, v1
    v_add_u32 v51, v51, v52
    v_and_b32 v50, 3, v50
    v_lshlrev_b32 v50, 3, v50
    v_lshl_add_u32 v{vPoll}, v51, 7, v50
    s_mul_i32 s36, s46, 24
    s_add_u32 s36, s36, s44
    s_lshl_b32 s36, s36, 7
    s_add_u32 s36, s36, {FLAG_OFF}
    v_lshlrev_b32 v50, 3, v1
    v_add_u32 v{vFs}, s36, v50
    v_mov_b32 v{vZ}, 0
    v_xor_b32 v50, v4, v7
    v_lshlrev_b32 v50, 4, v50
    v_lshl_add_u32 v50, v7, 8, v50
    v_lshl_add_u32 v{vRW(0)}, v1, 12, v50
    v_xor_b32 v{vRW(1)}, 64, v{vRW(0)}
    v_xor_b32 v{vRW(2)}, 0x80, v{vRW(0)}
    v_xor_b32 v{vRW(3)}, 0xc0, v{vRW(0)}
    v_lshl_add_u32 v50, v1, 2, v4
    v_xor_b32 v51, v50, v7
    v_lshlrev_b32 v51, 4, v51
    v_lshl_add_u32 v{vRR}, v50, 8, v51
    v_mul_u32_u24 v50, 1280, v50
    v_lshl_add_u32 v{vO}, v7, 3, v50
    STAMP_PRE
    s_waitcnt lgkmcnt(0)
    STAMP_POST
    s_and_b32 s36, s{sTab}, 0xff
    s_lshl_b32 s36, s36, 7
    v_add_u32 v{vO}, s36, v{vO}
    v_add_u32 v{vWd}, s36, v{vWd}
    s_lshr_b32 s{sRole}, s{sTab}, 16
    s_bfe_u32 s36, s{sTab}, 0x80008
    s_lshl_b32 s{sKD(0)}, s36, 10""")
    for i in range(1, 12):
        a(f"s_add_u32 s36, s{sKD(i - 1)}, 1024\ns_cmp_eq_u32 s36, 12288\ns_cselect_b32 s{sKD(i)}, 0, s36")
    for u in range(6):
        w = sTab + 1 + u
        a(f"""s_and_b32 s50, s{w}, 0xff
        s_mul_i32 s{sHB(u)}, s50, {HS}
        s_mul_i32 s{sOB(u)}, s50, 20480
        s_bfe_u32 s50, s{w}, 0x80008
        s_mul_i32 s{sFB(u)}, s50, 3072
        s_lshr_b32 s{sNeed(u)}, s{w}, 16""")
    pre_, post_ = "s_nop 0", "s_nop 0"
    if cfg["stamps"]:
        pre_ = "s_memtime s[88:89]"
        post_ = "\n    ".join([f"v_writelane_b32 v{vStamp}, s{sT0stamp}, 0", f"v_writelane_b32 v{vStamp}, s{sStamp}, 61",
                               f"v_writelane_b32 v{vStamp}, s84, 56", f"v_writelane_b32 v{vStamp}, s86, 57",
                               f"v_writelane_b32 v{vStamp}, s88, 58", f"s_memtime s[{sT0stamp}:{sT0stamp + 1}]"])
    L[:] = [l.replace("STAMP_PRE", pre_).replace("STAMP_POST", post_) for l in L if cfg["stamps"] or "STAMP_P" not in l]
    if cfg["stamps"]:
        a(f"s_waitcnt lgkmcnt(0)\nv_writelane_b32 v{vStamp}, s{sT0stamp}, 59\ns_memtime s[{sT0stamp}:{sT0stamp + 1}]\ns_waitcnt lgkmcnt(0)\nv_writelane_b32 v{vStamp}, s{sT0stamp}, 60")
    if cfg["warm"]:
        a("s_mov_b64 exec, 0")
    for code, role in ((1, "B"), (2, "C"), (3, "D")):
        a(f"s_cmp_eq_u32 s{sRole}, {code}\ns_cbranch_scc1 L_{role}_enter")
    a("s_branch L_A_enter")
    a(f"""
L_idle:
    s_cmp_lg_u32 s2, 240
    s_cbranch_scc1 L_noissue
    s_cmp_lg_u32 s{sWave}, 0
    s_cbranch_scc1 L_noissue
    v_mov_b32 v{vZ}, 0
    buffer_load_dwordx2 v[{vTag}:{vTag + 1}], v{vZ}, {srd(SRD_WS)}, 0 offen sc1
    s_waitcnt vmcnt(0)
    v_and_b32 v{vTag}, -8, v{vTag}
    v_add_u32 v{vTag + 1}, 0x7f4a7c15, v{vTag + 1}
    v_add_u32 v{vTag}, 0x9e3779b9, v{vTag}
    s_mov_b64 exec, 1
    buffer_store_dwordx2 v[{vTag}:{vTag + 1}], v{vZ}, {srd(SRD_DBG)}, 0 offen sc1
    s_mov_b64 exec, -1
    s_branch L_noissue""")
    a("L_exit:\ns_endpgm")
    return L


def assemble_sizes(lines):
    txt = '.amdgcn_target "amdgcn-amd-amdhsa--gfx950"\n.text\n'
    body = [re.sub(r"(s_c?branch\w*) \S+", r"\1 0", l) for l in lines if not l.rstrip().endswith(":")]
    with tempfile.TemporaryDirectory() as td:
        open(td + "/a.s", "w").write(txt + "\n".join(body) + "\n")
        subprocess.run(["clang", "-x", "assembler", "-target", "amdgcn-amd-amdhsa", "-mcpu=gfx950",
                        "-c", td + "/a.s", "-o", td + "/a.o"], check=True)
        dis = subprocess.run(["llvm-objdump", "-d", "--mcpu=gfx950", td + "/a.o"],
                             capture_output=True, text=True, check=True).stdout
    sz = [4 * len(m.group(1).split()) for m in re.finditer(r"// [0-9A-F]+: ([0-9A-F ]+)", dis)]
    assert len(sz) == len(body), (len(sz), len(body))
    it = iter(sz)
    return [0 if l.rstrip().endswith(":") else next(it) for l in lines]


def role_text(cfg, role, G, U, pre):
    P = Prog(cfg, role, G, U)
    pre_vm = []
    if G:
        pre = {t: P.stage_pieces(t) for t in range(2)}
        pre_vm = [pc[-1] for t in range(2) for pc in pre[t]]
    P.all_dsr = []
    ops = P.build(pre)
    seen_bar = [o for o in ops if o.kind == "bar" and o.need_lg is not None]
    for k, o in enumerate(ops):
        if o.kind == "bar" and G and k and "P1" not in o.name and o.need_lg == [] and not o.need_vm:
            o.need_lg = [q for q in ops[:k] if q.kind == "dsr"]
    for k, o in enumerate(ops):
        if o.kind == "waitlg":
            o.kind = "misc"
            o.need_lg = [q for q in ops[:k] if q.kind in ("dsr", "dsw")]
    ops, mx = insert_waits(ops, pre_vm)
    check_regs(ops, pre_vm)
    check_lds(ops, pre_vm)
    check_hazards(ops)
    lines = [o.text if o.kind == "label" else "    " + o.text for o in ops]
    end = [f"L_{role}_end:"]
    if cfg["stamps"]:
        end += ["    s_waitcnt vmcnt(0)", f"    v_writelane_b32 v{vStamp}, s{sStamp}, {P.nstamp}",
                f"    s_memtime s[{sStamp}:{sStamp + 1}]", "    s_waitcnt lgkmcnt(0)",
                f"    v_writelane_b32 v{vStamp}, s{sStamp}, {P.nstamp + 1}",
                f"    s_memrealtime s[{sStamp}:{sStamp + 1}]", "    s_waitcnt lgkmcnt(0)",
                f"    v_writelane_b32 v{vStamp}, s{sStamp}, 62", f"    v_writelane_b32 v{vStamp}, s{sRole}, 63",
                f"    s_lshl_b32 s4, s2, 10", f"    s_lshl_b32 s5, s{sWave}, 8", "    s_add_u32 s4, s4, s5",
                f"    s_add_u32 s4, s4, {STAMP_OFF}", "    v_lshlrev_b32 v1, 2, v0",
                f"    buffer_store_dword v{vStamp}, v1, {srd(SRD_WS)}, s4 offen"]
    end.append("    s_endpgm")
    lines += end
    for t in P.ool:
        lines += t.split("\n")
    head = [f"L_{role}_enter:"]
    if cfg["warm"]:
        nhead = 4 * 7 + 4
        sizes = assemble_sizes(lines)
        out, off, nextmark, marks = [], nhead, 4096, []
        for l, s in zip(lines, sizes):
            if s and off >= nextmark:
                pg, ln = nextmark // 4096, (nextmark % 4096) // 64
                marks.append((pg, ln))
                out += [f"L_{role}_w{pg}_{ln}:", f"    s_cbranch_execz @{pg}_{ln}@"]
                off += 4
                nextmark = nextmark + 64 if ln == 0 else (pg + 1) * 4096
            out.append(l)
            off += s
        pages = sorted({p for p, _ in marks})
        txt = "\n".join(out)
        for pg, ln in marks:
            if ln == 0 and (pg, 1) in marks:
                tgt = f"L_{role}_w{pg}_1"
            else:
                tgt = f"L_{role}_w{pg + 4}_0" if pg + 4 in pages else f"L_{role}_go"
            txt = txt.replace(f"@{pg}_{ln}@", tgt)
        for w in range(1, 4):
            tgt = f"L_{role}_w{w}_0" if w in pages else f"L_{role}_go"
            head += [f"    s_cmp_eq_u32 s{sWave}, {w}", f"    s_cbranch_scc1 {tgt}"]
        head += [f"    s_branch L_{role}_w4_0" if 4 in pages else "    s_nop 0",
                 f"L_{role}_go:", "    s_mov_b64 exec, -1"]
        lines = txt.split("\n")
    info = dict(role=role, nops=len(ops), maxvm=mx, stamps=P.stamp_names)
    return [".p2align 12"] + head + lines, info


def generate(cfg):
    ref = open("standalone__glu_gated_reglu__prompt.s.ref").read().split("\n")
    hdr = [l for l in ref if l.startswith(";") and "@launch" not in l]
    hdr.append("; @launch grid=(256,1,1) block=(256,1,1) lds=163840")
    pre = {t: Prog(cfg, "A", 7, 5).stage_pieces(t) for t in range(2)}
    L = hdr + ['.amdgcn_target "amdgcn-amd-amdhsa--gfx950"', ".text", f".globl {NAME}", ".p2align 8",
               f".type {NAME},@function", f"{NAME}:"]
    L += prologue(cfg, pre)
    infos = []
    for role, G, U in (("A", 7, 5), ("B", 6, 5), ("C", 6, 6), ("D", 0, 6)):
        t, info = role_text(cfg, role, G, U, pre)
        L += t
        infos.append(info)
    L += [".p2align 6", ".type L_table,@object", "L_table:"]
    for w in make_table(cfg):
        L.append("    .long " + ", ".join(hex(x) for x in w))
    L += [".size L_table, 8192", '.section .rodata,"a"', ".p2align 6", f".amdhsa_kernel {NAME}",
          "  .amdhsa_next_free_vgpr 512", "  .amdhsa_next_free_sgpr 102", "  .amdhsa_accum_offset 256",
          "  .amdhsa_group_segment_fixed_size 0", "  .amdhsa_kernarg_size 56", "  .amdhsa_user_sgpr_count 2",
          "  .amdhsa_user_sgpr_kernarg_segment_ptr 1", "  .amdhsa_system_sgpr_workgroup_id_x 1",
          "  .amdhsa_float_denorm_mode_32 3", ".end_amdhsa_kernel"]
    return "\n".join(L) + "\n", infos


if __name__ == "__main__":
    cfg = dict(CFG)
    for kv in sys.argv[2:]:
        k, v = kv.split("=", 1)
        assert k in cfg, k
        cfg[k] = v if isinstance(CFG[k], str) else eval(v)
    txt, infos = generate(cfg)
    open(sys.argv[1], "w").write(txt)
    for i in infos:
        print(i)
```

```python
import os, re, subprocess, sys, tempfile
sys.path.insert(0, os.path.dirname(os.path.abspath(__file__)))
from sched import Op, R, regs, insert_waits, check_regs, check_lds, check_hazards

NAME = "standalone__glu_gated_reglu__prompt_kernel"
M, D, F = 2048, 640, 1536
HS = 49152
FLAG_OFF = 0
H_OFF = 0x10000
STAMP_OFF = 0x1000000
WS_BYTES = 0x2000000

CFG = dict(stamps=0, aux_x="", aux_w="", aux_d="", aux_h="sc1", aux_o="", rot=1, warm=1, DH=8,
           spin=40000, epi_rate=3, pub4=(2, 10), pub5=(4, 4), xorder=1, spp=9, rd_delay=26, tag_at=11, diag_delay=0, diag_chase=0, diag_buf="D", diag_stride=384)

vX, vWg, vWu, vWd, vHs, vHl0 = 8, 9, 10, 11, 12, 13
vHl = (14, 15)
vPoll, vO, vFs, vZ = 16, 17, 18, 19
vXA = lambda win, k: 20 + 4 * win + k
vWA = lambda win: 28 + win
vDA = lambda t: 30 + t
vRW = lambda t: 34 + t
vRR = 38
vFlag = 40
vPD = (42, 44)
vPT = 46
vStamp = 47
vTag = 48
vPk = (52, 56)
vDB = lambda t: 60 + t
ACC = lambda a: R("v", 64 + 16 * a, 16)
Wreg = lambda ks: R("v", 128 + 4 * ks, 4) if ks < 32 else R("a", 224 + 4 * (ks - 32), 4)
WDreg = lambda i, t: R("a", 16 * i + 4 * t, 4)
XF = lambda p: R("a", 192 + 4 * (p % 8), 4)


def Hreg(u, i):
    k = (u % 4) * 12 + i
    return R("v", 128 + 4 * k, 4) if k < 32 else R("a", 192 + 4 * (k - 32), 4)


ACC2 = lambda u, t: R("v", 96 + 16 * (u % 2) + 4 * t, 4)
RT = lambda w: R("v", 64 + 4 * w, 4)

sWave = 3
SRD_X, SRD_G, SRD_U, SRD_D, SRD_O, SRD_WS, SRD_DBG = 8, 12, 16, 20, 24, 28, 32
sTab = 52
sW1k, sW4k = 60, 61
sKX = lambda t: 62 + t
sKD = lambda i: 72 + i
sHB = lambda u: 84 + u
sOB = lambda u: 90 + u
sFB = lambda u: 36 + u
sNeed = lambda u: 42 + u
sTagA, sTagB = 48, 49
sMask = 50
sT0, sT1, sT2, sT3 = 4, 5, 6, 7
sSpin = 96
sRole = 97
sStamp = 98
sT0stamp = 100
srd = lambda b: f"s[{b}:{b + 3}]"

SLOT = [0, 32768, 98304, 65536]
Z0, Z1 = 131072, 147456
RED = 0


def xunit_addr(n):
    return SLOT[(2 + n // 8) % 4] + (n % 8) * 4096


def blocks(addr, nbytes):
    return [f"L{a // 4096}" for a in range(addr, addr + nbytes, 4096)]


def salu(text, wr=(), rd=(), **k):
    return Op(text, "salu", wr=wr, rd=rd, **k)


def valu(text, wr=(), rd=(), **k):
    return Op(text, "valu", wr=wr, rd=rd, **k)


def dma(srdb, voff, soff, m0base_s, lds_addr, blk, gen, aux, private=False):
    a = salu(f"s_add_u32 m0, s{m0base_s}, {lds_addr}", wr=["m0"])
    aux = (aux + " ") if aux else ""
    b = Op(f"buffer_load_dwordx4 v{voff}, {srd(srdb)}, s{soff} offen {aux}lds", "vm",
           rd=["m0", f"v{voff}", f"s{soff}"], lds_w=[(blk, gen)], private=private)
    return a, b


class Stream:
    def __init__(self):
        self.mf, self.gap, self.head = [], [], []

    def add(self, op):
        self.mf.append(op)
        self.gap.append([])

    def put(self, g, *ops):
        (self.head if g < 0 else self.gap[g]).extend(ops)

    def flat(self):
        out = list(self.head)
        for m, g in zip(self.mf, self.gap):
            out.append(m)
            out.extend(g)
        return out


class Prog:
    def __init__(self, cfg, role, G, U):
        self.c, self.role, self.G, self.U = cfg, role, G, U
        self.ool = []
        self.nstamp = 0
        self.stamp_names = []
        self.wd_rds = {}

    def stamp(self, name):
        if not self.c["stamps"]:
            return []
        ops = []
        if self.nstamp:
            ops.append(valu(f"v_writelane_b32 v{vStamp}, s{sStamp}, {self.nstamp}"))
        self.nstamp += 1
        self.stamp_names.append(name)
        ops.append(Op(f"s_memtime s[{sStamp}:{sStamp + 1}]", "misc"))
        return ops

    def stage_pieces(self, t):
        c, base, out = self.c, SLOT[t % 4], []
        for p in range(2):
            pre = salu(f"s_mul_i32 s{sT0}, s{sKX(t)}, 1536", wr=[f"s{sT0}"]) if p == 0 else \
                salu(f"s_add_u32 s{sT0}, s{sT0}, 24576", wr=[f"s{sT0}"])
            for mat, (sr, vo) in enumerate(((SRD_G, vWg), (SRD_U, vWu))):
                a, b = dma(sr, vo, sT0, sT3, base + mat * 8192 + p * 1024, f"W{t % 4}", t, c["aux_w"])
                out.append([a, pre, b] if mat == 0 else [a, Op("s_nop 0", "misc"), b])
        for g in range(4):
            a, b = dma(SRD_X, vX, sT1, sW1k, base + 16384 + g * 4096, f"L{(base + 16384) // 4096 + g}", ("I", t), c["aux_x"])
            pre = salu(f"s_add_u32 s{sT1}, s{sKX(t)}, {g * 40960}", wr=[f"s{sT1}"])
            out.append([a, pre, b])
        for piece in out[:4]:
            piece[-1].lds_w = [(k, ("I", t)) for k in blocks(base, 16384)]
        return out

    def xunit_piece(self, n):
        g, t = 4 + n // 10, n % 10
        addr = xunit_addr(self.xslot[n])
        a, b = dma(SRD_X, vX, sT1, sW1k, addr, f"L{addr // 4096}", ("S", n), self.c["aux_x"])
        pre = salu(f"s_add_u32 s{sT1}, s{sKX(t)}, {g * 40960}", wr=[f"s{sT1}"])
        return [a, pre, b]

    def wd_pieces(self, i, buf):
        out = []
        for p in range(4):
            pre = salu(f"s_mul_i32 s{sT2}, s{sKD(i)}, 40", wr=[f"s{sT2}"]) if p == 0 else \
                salu(f"s_add_u32 s{sT2}, s{sT2}, 10240", wr=[f"s{sT2}"])
            a, b = dma(SRD_D, vWd, sT2, sW4k, buf + p * 1024, None, None, self.c["aux_d"], private=True)
            b.lds_w = [(k, ("D", i)) for k in blocks(buf, 16384)]
            out.append([a, pre, b])
        return out

    def wd_reads(self, i, buf, loads):
        ops = []
        for t in range(4):
            for h in range(2):
                va, off = (vDA(t), buf - 98304) if buf >= 98304 else (vDB(t), buf - 32768)
                d = WDreg(i, t).sub(2 * h, 2)
                ops.append(Op(f"ds_read_b64_tr_b16 {d}, v{va} offset:{off + 1024 * h}", "dsr", need_vm=loads,
                              rd=[f"v{va}"], wr=d.names(), lds_r=[(k, ("D", i)) for k in blocks(buf, 16384)],
                              private=True))
        return ops

    def epilogue(self, g, acc):
        a, pk = ACC(acc), vPk[g % 2]
        ops = []
        for r in range(8):
            x = a.base + r
            ops.append(valu(f"v_max_f32 v{x}, 0, v{x}", wr=[f"v{x}"], rd=[f"v{x}"]))
        for r in range(8):
            x = a.base + r
            ops.append(valu(f"v_mul_f32 v{x}, v{x}, v{x + 8}", wr=[f"v{x}"], rd=[f"v{x}", f"v{x + 8}"]))
        for r in range(4):
            x = a.base + 2 * r
            ops.append(valu(f"v_cvt_pk_bf16_f32 v{pk + r}, v{x}, v{x + 1}", wr=[f"v{pk + r}"], rd=[f"v{x}", f"v{x + 1}"]))
        ops.append(salu(f"s_mov_b32 s{sMask}, {2 * g * HS}", wr=[f"s{sMask}"]))
        st = Op(f"buffer_store_dwordx4 v[{pk}:{pk + 3}], v{vHs}, {srd(SRD_WS)}, s{sMask} offen sc1", "vm",
                rd=regs("v", pk, 4) + [f"v{vHs}", f"s{sMask}"])
        ops.append(st)
        return ops, st

    def publish(self, stores, first):
        ops = []
        if not first:
            ops.append(valu(f"v_add_u32 v{vFlag}, 1, v{vFlag}", wr=[f"v{vFlag}"], rd=[f"v{vFlag}"]))
        ops.append(salu("s_mov_b64 exec, 1", need_vm=stores))
        ops.append(Op(f"buffer_store_dwordx2 v[{vFlag}:{vFlag + 1}], v{vFs}, {srd(SRD_WS)}, 0 offen sc1", "vm",
                      rd=[f"v{vFlag}", f"v{vFlag + 1}", f"v{vFs}"]))
        ops.append(salu("s_mov_b64 exec, -1"))
        return ops

    def tag_slow(self, lab):
        self.ool.append(f"""{lab}:
    s_mov_b32 s{sSpin}, 0
{lab}_loop:
    buffer_load_dwordx2 v[{vTag}:{vTag + 1}], v{vZ}, {srd(SRD_DBG)}, 0 offen sc1
    s_add_u32 s{sSpin}, s{sSpin}, 1
    s_waitcnt vmcnt(0)
    v_readfirstlane_b32 s{sTagA}, v{vTag}
    v_readfirstlane_b32 s{sTagB}, v{vTag + 1}
    s_nop 3
    s_cmp_lg_u32 s{sTagA}, 0
    s_cbranch_scc1 {lab}_back
    s_cmp_lt_u32 s{sSpin}, {self.c['spin']}
    s_cbranch_scc1 {lab}_loop
    s_branch {lab}_back""")

    def tag_use(self):
        ops = [salu(f"s_and_b32 s{sTagA}, s{sTagA}, -8", wr=[f"s{sTagA}"]),
               valu(f"v_mov_b32 v{vFlag + 1}, s{sTagB}", wr=[f"v{vFlag + 1}"]),
               salu(f"s_add_u32 s{sMask}, s{sTagA}, 4", wr=[f"s{sMask}"]),
               valu(f"v_mov_b32 v{vFlag}, s{sMask}", wr=[f"v{vFlag}"])]
        for u in range(self.U):
            ops.append(salu(f"s_add_u32 s{sNeed(u)}, s{sNeed(u)}, s{sTagA}", wr=[f"s{sNeed(u)}"]))
        return ops

    def poll(self, u):
        d = vPD[u % 2]
        return Op(f"buffer_load_dwordx2 v[{d}:{d + 1}], v{vPoll}, {srd(SRD_WS)}, s{sFB(u)} offen sc1", "vm",
                  rd=[f"v{vPoll}"], wr=[f"v{d}", f"v{d + 1}"])

    def check(self, u, pollop):
        d, lab = vPD[u % 2], f"L_{self.role}_chk{u}"
        body = [f"v_subrev_u32 v{vPT}, s{sNeed(u)}, v{d}",
                f"v_cmp_eq_u32 s[{sMask}:{sMask + 1}], s{sTagB}, v{d + 1}",
                f"v_cmp_gt_u32 vcc, 8, v{vPT}"]
        ops = [valu(body[0], wr=[f"v{vPT}"], rd=[f"v{d}"], need_vm=[pollop]),
               valu(body[1], wr=[f"s{sMask}", f"s{sMask + 1}"], rd=[f"v{d + 1}"]),
               valu(body[2], wr=["vcc"], rd=[f"v{vPT}"]),
               valu(f"v_add_u32 v{vHl[u % 2]}, s{sHB(u)}, v{vHl0}", wr=[f"v{vHl[u % 2]}"], rd=[f"v{vHl0}"]),
               Op("s_nop 0", "misc"),
               salu(f"s_and_b64 vcc, vcc, s[{sMask}:{sMask + 1}]", rd=["vcc", f"s{sMask}"], wr=["vcc"]),
               salu("s_cmp_eq_u64 vcc, exec"),
               salu(f"s_cbranch_scc0 {lab}"),
               Op(f"{lab}_back:", "label")]
        self.ool.append(f"""{lab}:
    s_mov_b32 s{sSpin}, 0
{lab}_loop:
    buffer_load_dwordx2 v[{d}:{d + 1}], v{vPoll}, {srd(SRD_WS)}, s{sFB(u)} offen sc1
    s_add_u32 s{sSpin}, s{sSpin}, 1
    s_waitcnt vmcnt(0)
    {body[0]}
    {body[1]}
    {body[2]}
    s_nop 1
    s_and_b64 vcc, vcc, s[{sMask}:{sMask + 1}]
    s_cmp_eq_u64 vcc, exec
    s_cbranch_scc1 {lab}_back
    s_cmp_lt_u32 s{sSpin}, {self.c['spin']}
    s_cbranch_scc1 {lab}_loop
    s_branch {lab}_back""")
        return ops

    def hload(self, u, i):
        d, aux = Hreg(u, i), self.c["aux_h"]
        return Op(f"buffer_load_dwordx4 {d}, v{vHl[u % 2]}, {srd(SRD_WS)}, s{sKD(i)} offen {aux}", "vm",
                  rd=[f"v{vHl[u % 2]}"], wr=d.names())

    def red_write(self, u):
        ops = []
        for t in range(4):
            s = ACC2(u, t)
            ops.append(Op(f"ds_write_b128 v{vRW(t)}, {s} offset:{RED + 16384 * (u % 2)}", "dsw",
                          rd=s.names() + [f"v{vRW(t)}"],
                          lds_w=[(k, ("R", u)) for k in blocks(RED + 16384 * (u % 2), 16384)]))
        return ops

    def red_read(self, u):
        ops = []
        for w in range(4):
            d = RT(w)
            ops.append(Op(f"ds_read_b128 {d}, v{vRR} offset:{RED + 16384 * (u % 2) + 4096 * w}", "dsr",
                          rd=[f"v{vRR}"], wr=d.names(),
                          lds_r=[(k, ("R", u)) for k in blocks(RED + 16384 * (u % 2), 16384)]))
        return ops

    def red_finish(self, u, reads):
        ops = []
        b = RT(0).base
        for (x, y, need) in ((0, 4, reads[:2]), (8, 12, reads[2:]), (0, 8, [])):
            for r in range(4):
                ops.append(valu(f"v_add_f32 v{b + x + r}, v{b + x + r}, v{b + y + r}", wr=[f"v{b + x + r}"],
                                rd=[f"v{b + x + r}", f"v{b + y + r}"], need_lg=need))
        pk = vPk[0]
        for r in range(2):
            ops.append(valu(f"v_cvt_pk_bf16_f32 v{pk + r}, v{b + 2 * r}, v{b + 2 * r + 1}", wr=[f"v{pk + r}"],
                            rd=[f"v{b + 2 * r}", f"v{b + 2 * r + 1}"]))
        ops.append(Op(f"buffer_store_dwordx2 v[{pk}:{pk + 1}], v{vO}, {srd(SRD_O)}, s{sOB(u)} offen {self.c['aux_o']}",
                      "vm", rd=[f"v{pk}", f"v{pk + 1}", f"v{vO}"]))
        return ops

    def build(self, pre_stage):
        c, G, U = self.c, self.G, self.U
        ops = []
        wd_loads, wd_buf, wd_done = {}, {}, set()
        tail_wd = []
        late_pub = []
        if G:
            ops_p1, tail_wd, late_pub = self.build_p1(pre_stage, wd_loads, wd_buf, wd_done)
            ops += ops_p1
        else:
            ops += self.build_idle(wd_loads, wd_buf, wd_done)
        ops += self.build_p2(tail_wd, late_pub, wd_loads, wd_buf, wd_done)
        return ops

    def build_p1(self, pre_stage, wd_loads, wd_buf, wd_done):
        c, G = self.c, self.G
        nS = 2 * (G - 4)
        nx = 10 * (G - 4)
        st = Stream()
        start = [16 * t for t in range(10)] + [160 + 20 * j for j in range(nS)]
        S = lambda j, g=0: 160 + 20 * j + g
        I = lambda t, g=0: 16 * t + g
        ntot = 160 + 20 * nS
        order = list(range(nx))
        if c["xorder"]:
            first = [10 * g + t for g in range(G - 4) for t in (0, 1)]
            order = first + [n for n in order if n not in first]
        self.xslot = {}
        for k0 in range(0, nx, 8):
            for k, n in enumerate(sorted(order[k0:k0 + 8])):
                self.xslot[n] = k0 + k
        info = []
        for t in range(10):
            base = SLOT[t % 4] + 16384
            seq = [(k, g) for k in range(4) for g in range(4)] if t < 9 else [(k, g) for g in range(4) for k in range(4)]
            for k, g in seq:
                info.append((4 * t + k, g, base + 4096 * g, k, ("I", t), 4 * t + k == 0))
        accof = {4: 0, 5: 1, 6: 0}
        for j in range(nS):
            g = 4 + j // 2
            for cc in range(5):
                t = 5 * (j % 2) + cc
                n = 10 * (g - 4) + t
                for k in range(4):
                    info.append((4 * t + k, accof[g], xunit_addr(self.xslot[n]), k, ("S", n), 4 * t + k == 0))
        xrd, wrd = [], {}
        for p, (ks, a, addr, k, key, first) in enumerate(info):
            win, off = addr // 65536, addr % 65536
            d = XF(p)
            xrd.append(Op(f"ds_read_b128 {d}, v{vXA(win, k)} offset:{off}", "dsr", rd=[f"v{vXA(win, k)}"],
                          wr=d.names(), lds_r=[(f"L{addr // 4096}", key)]))
        for ks in range(40):
            t, k = ks // 4, ks % 4
            base = SLOT[t % 4]
            win, off = base // 65536, base % 65536
            wrd[ks] = []
            for h in range(2):
                d = Wreg(ks).sub(2 * h, 2)
                wrd[ks].append(Op(f"ds_read_b64_tr_b16 {d}, v{vWA(win)} offset:{off + 2048 * k + 512 * h}", "dsr",
                                  rd=[f"v{vWA(win)}"], wr=d.names(),
                                  lds_r=[(b, ("I", t)) for b in blocks(base, 16384)]))
        for p, (ks, a, addr, k, key, first) in enumerate(info):
            acc, w, x = ACC(a), Wreg(ks), XF(p)
            srcc = "0" if first else str(acc)
            st.add(Op(f"v_mfma_f32_32x32x16_bf16 {acc}, {w}, {x}, {srcc}", "mfma", passes=8,
                      rd=w.names() + x.names() + ([] if first else acc.names()), wr=acc.names(),
                      need_lg=[xrd[p]] + (wrd[ks] if p < 160 else []), src=wrd[ks]))
        stage = {0: pre_stage[0], 1: pre_stage[1]}
        for t in range(2, 10):
            stage[t] = self.stage_pieces(t)
        xp = {n: self.xunit_piece(n) for n in range(nx)}
        bgap = lambda s: start[s] - 5
        wdp = {}
        self.sched_p1(st, stage, xp, order, wdp, wd_loads, wd_buf, wd_done, start, bgap, ntot, nS)
        bar_first_read = {}
        for s in range(len(start)):
            if s < 10:
                need = [pc[-1] for pc in stage[s]]
            else:
                j = s - 10
                need = [xp[10 * (j // 2) + 5 * (j % 2) + cc][-1] for cc in range(5)]
            b = Op("s_barrier", "bar", need_vm=need)
            lst = st.head if s == 0 else st.gap[bgap(s)]
            lst[0:0] = [b] + self.stamp(f"B{s}") if s else []
            if s == 0:
                st.head.extend([b] + self.stamp("B0"))
        for p in range(ntot):
            s = max(k for k in range(len(start)) if start[k] <= p)
            g = max(p - 6, bgap(s))
            ks = info[p][0]
            rd = []
            if p < 160 and ks in wrd and not any(info[q][0] == ks for q in range(start[s], p)):
                rd += wrd[ks]
            rd.append(xrd[p])
            if s == 0 and g < 0:
                st.head.extend(rd)
            else:
                lst = st.gap[g]
                k = 0
                while k < len(lst) and (lst[k].kind in ("bar", "dsr") or "s_memtime" in lst[k].text or "writelane" in lst[k].text):
                    k += 1
                lst[k:k] = rd
        st.put(bgap(c["tag_at"] - 1) + 2, Op(f"s_load_dwordx2 s[{sTagA}:{sTagB}], s[{SRD_DBG}:{SRD_DBG + 1}], 0", "misc"))
        lab = f"L_{self.role}_tag"
        self.tag_slow(lab)
        g = bgap(c["tag_at"])
        k = [o.kind for o in st.gap[g]].index("bar")
        st.gap[g][k:k] = [Op("s_waitcnt lgkmcnt(0)", "waitlg")]
        st.put(g + 1, salu(f"s_cmp_eq_u32 s{sTagA}, 0"), salu(f"s_cbranch_scc1 {lab}"), Op(f"{lab}_back:", "label"))
        tu = self.tag_use()
        for k, o in enumerate(tu):
            st.put(g + 2 + k // 3, o)
        rate = c["epi_rate"]
        stores = {}

        def place_epi(g, acc, g0):
            e, s = self.epilogue(g, acc)
            stores[g] = s
            for k, o in enumerate(e):
                st.put(g0 + k // rate, o)
            return g0 + (len(e) - 1) // rate + 1
        nxt = place_epi(0, 0, I(9, 6))
        assert nxt <= 160, nxt
        for g in (1, 2, 3):
            nxt = place_epi(g, g, max(nxt, I(9, 4 * g + 6)))
        assert nxt <= S(2), "acc1 must be free before group 5"
        for g in range(4, G - 1):
            place_epi(g, accof[g], S(2 * (g - 3), 2))
        pubs = [([stores[g] for g in range(4)], c["pub4"])]
        if G == 7:
            pubs.append(([stores[4]], c["pub5"]))
        for k, (sts, (j, gg)) in enumerate(pubs):
            st.put(min(S(j, gg), ntot - 1), *self.publish(sts, k == 0))
        out = st.flat()
        e, s_last = self.epilogue(G - 1, accof[G - 1])
        rest = list(self.tail_pieces)
        out += self.stamp("P1end")
        lead = rest[:4]
        rest = rest[4:]
        for pc in lead:
            out += pc
        if len(lead) < 4:
            out.append(Op("s_nop 11", "misc"))
        out += e
        out += self.publish([stores[G - 2]], False)
        return out, rest, [s_last]

    def sched_p1(self, st, stage, xp, order, wdp, wd_loads, wd_buf, wd_done, start, bgap, ntot, nS):
        G = self.G
        for t in range(2, 10):
            lo = bgap(t - 2) + 1 if t > 2 else 0
            hi = bgap(t - 1)
            for k, pc in enumerate(stage[t]):
                st.put(lo + (k * (hi - lo)) // 8, *pc)
        avail = {Z0: 0, Z1: 0}
        for kb in (0, 1, 2, 3, 6, 7):
            users = [n for n, s in self.xslot.items() if 4 * kb <= s < 4 * kb + 4]
            last = max([10 + 2 * (n // 10) + (n % 10) // 5 for n in users] + [6 + kb // 2])
            avail[xunit_addr(4 * kb)] = bgap(last + 2) + 1 if last + 2 < len(start) else ntot
        pos = float(bgap(8) + 1)
        step = lambda q: 2.0 if q < 160 else 20.0 / self.c["spp"]
        for k, n in enumerate(order):
            pos = max(pos, bgap(8 + k // 8) + 1)
            st.put(int(pos), *xp[n])
            pos += step(pos)
        self.tail_pieces = []
        rdfree = 0
        for i in range(12):
            buf = min(avail, key=lambda b: (max(avail[b], pos), avail[b]))
            wd_buf[i] = buf
            wdp[i] = self.wd_pieces(i, buf)
            wd_loads[i] = [pc[-1] for pc in wdp[i]]
            pos = max(pos, avail[buf])
            for pc in wdp[i]:
                if pos >= ntot:
                    self.tail_pieces.append(pc)
                else:
                    st.put(int(pos), *pc)
                    pos += step(pos)
            g = max(int(pos) + self.c["rd_delay"], rdfree)
            if g + 4 < ntot:
                rds = self.wd_reads(i, buf, wd_loads[i])
                for k, o in enumerate(rds):
                    st.put(g + k // 2, o)
                wd_done.add(i)
                self.wd_rds[i] = rds
                rdfree = g + 4
                avail[buf] = g + 7
            else:
                avail[buf] = ntot + 1 + i
        for i in range(12):
            prev = [q for q in range(i) if wd_buf[q] == wd_buf[i]]
            if prev and prev[-1] in self.wd_rds:
                wd_loads[i][0].need_lg = list(self.wd_rds[prev[-1]])

    def build_idle(self, wd_loads, wd_buf, wd_done):
        N = lambda k: xunit_addr(4 * k)
        bufs = [Z0, Z1, N(0), N(1)]
        out = []
        pcs = {}
        for i in range(12):
            wd_buf[i] = bufs[i % 4]
            pcs[i] = self.wd_pieces(i, wd_buf[i])
            wd_loads[i] = [pc[-1] for pc in pcs[i]]
        for i in range(3):
            for pc in pcs[i]:
                out += pc
        for i in range(12):
            rds = self.wd_reads(i, wd_buf[i], wd_loads[i])
            out += rds
            wd_done.add(i)
            self.wd_rds[i] = rds
            if i + 3 < 12:
                prev = self.last_rds if i else []
                pcs[i + 3][0][-1].need_lg = prev
                for pc in pcs[i + 3]:
                    out += pc
            self.last_rds = rds
        lab = f"L_{self.role}_tag"
        self.tag_slow(lab)
        out.append(Op("s_waitcnt vmcnt(0) lgkmcnt(0)", "waitall"))
        out.append(salu(f"s_branch {lab}"))
        out.append(Op(f"{lab}_back:", "label"))
        out += self.tag_use()
        out += self.stamp("Dready")
        return out

    def build_p2(self, tail_wd, late_pub, wd_loads, wd_buf, wd_done):
        c, U, DH = self.c, self.U, self.c["DH"]
        out = []
        H = {(u, i): self.hload(u, i) for u in range(U) for i in range(12)}
        polls = {u: self.poll(u) for u in range(U)}
        wdr = {}
        pending = [i for i in range(12) if i not in wd_done]
        issued = lambda i: all(not any(pc[-1] is l for pc in tail_wd) for l in wd_loads[i])

        def reads(i):
            wdr[i] = self.wd_reads(i, wd_buf[i], wd_loads[i])
            pending.remove(i)
            return wdr[i]
        if self.G:
            out.append(Op("s_barrier", "bar", need_lg=self.all_dsr))
        tail_wd = list(tail_wd)
        npoll = max(0, len(tail_wd) - DH)
        k = 0
        while tail_wd:
            pc = tail_wd.pop(0)
            i = [q for q in range(12) if pc[-1] in wd_loads[q]][0]
            if pc[-1] is wd_loads[i][0]:
                prev = [q for q in range(i) if wd_buf[q] == wd_buf[i]]
                while prev and prev[-1] in pending:
                    out += reads(pending[0])
                if prev and prev[-1] in wdr:
                    pc[-1].need_lg = wdr[prev[-1]]
            if k == npoll:
                out.append(polls[0])
            out += pc
            k += 1
        if k <= npoll:
            out.append(polls[0])
        while len(pending) > 2:
            out += reads(pending[0])
        if self.role == "A":
            lab = "L_A_noP2"
            out.append(salu(f"s_cmp_eq_u32 s{sRole}, 4"))
            out.append(salu(f"s_cbranch_scc1 {lab}"))
            txt = "\n    ".join(o.text for o in self.publish([], False))
            self.ool.append(f"{lab}:\n    s_waitcnt vmcnt(0)\n    {txt}\n    s_branch L_{self.role}_end")
        out += self.check(0, polls[0])
        out += self.stamp("chk0")
        for n in range(DH):
            if n == 12 - DH and U > 1:
                out.append(polls[1])
            out.append(H[(0, n)])
            if n % 4 == 3 and pending:
                out += reads(pending[0])
        while pending:
            out += reads(pending[0])
        if late_pub:
            e = self.publish(late_pub, False)
            out += e
        st = Stream()
        allwd = [o for i in wdr for o in wdr[i]]
        for u in range(U):
            for i in range(12):
                for t in range(4):
                    acc, w, h = ACC2(u, t), WDreg(i, t), Hreg(u, i)
                    srcc = "0" if i == 0 else str(acc)
                    st.add(Op(f"v_mfma_f32_16x16x32_bf16 {acc}, {w}, {h}, {srcc}", "mfma", passes=4,
                              rd=w.names() + h.names() + ([] if i == 0 else acc.names()), wr=acc.names(),
                              need_vm=[H[(u, i)]], need_lg=wdr.get(i, []) if u == 0 else [],
                              src=wdr.get(i, self.wd_rds.get(i, []))))
        for n in range(DH, 12 * U):
            u, i = divmod(n, 12)
            g = 4 * (n - DH)
            if i == 0:
                ck = self.check(u, polls[u])
                st.put(g - 2, *ck[:2])
                st.put(g - 1, *ck[2:4])
                st.put(g, *ck[5:])
                st.put(g, *self.stamp(f"chk{u}"))
            if (n + DH) % 12 == 0 and (n + DH) // 12 < U:
                st.put(g + 1, polls[(n + DH) // 12])
            st.put(g + 1, H[(u, i)])
        for u in range(U - 1):
            g0 = 48 * (u + 1)
            wr_ = self.red_write(u)
            for k, o in enumerate(wr_):
                st.put(g0 + 2 + 2 * k, o)
            rd_ = self.red_read(u)
            st.put(g0 + 14, Op("s_barrier", "bar", need_lg=wr_))
            for k, o in enumerate(rd_):
                st.put(g0 + 14 + k, o)
            for k, o in enumerate(self.red_finish(u, rd_)):
                st.put(g0 + 22 + k, o)
        out += st.flat()
        out += self.stamp("P2mf")
        u = U - 1
        out.append(Op("s_nop 4", "misc"))
        wr_ = self.red_write(u)
        out += wr_
        out.append(Op("s_barrier", "bar", need_lg=wr_))
        rd_ = self.red_read(u)
        out += rd_
        out += self.red_finish(u, rd_)
        out += self.stamp("end")
        return out


SIZES = [7, 6, 7, 6, 6]
STARTS = [0, 7, 13, 20, 26]


def g16_source(g16):
    g32 = g16 // 2
    mh, r = divmod(g32, 32)
    mt = max(k for k in range(5) if STARTS[k] <= r)
    j = r - STARTS[mt]
    return 5 * mh + mt, (4 if j < 4 else j + 1)


def make_table(cfg):
    tab = [[0] * 8 for _ in range(256)]
    six = [i for i in range(30) if SIZES[i // 6] == 6]
    seven = [i for i in range(30) if SIZES[i // 6] == 7]
    sets = [six[0:5], six[5:8] + [30, 31], six[8:13], six[13:18], seven[0:5], seven[5:10]]
    nu = [6, 6, 5, 5, 5, 5]
    t0 = [0, 0, 0, 0, 800, 800]
    for x in range(8):
        p, dh = x >> 1, x & 1
        units = sorted(range(32 * p, 32 * p + 32), key=lambda g: (g16_source(g)[1], g))
        slots = sorted((t0[c] + 872 * i, c, i) for c in range(6) for i in range(nu[c]))
        lst = {c: [None] * nu[c] for c in range(6)}
        for g, (_, c, i) in zip(units, slots):
            lst[c][i] = g
        for c in range(6):
            for dd, idx in enumerate(sets[c]):
                role = 3 if idx >= 30 else (0 if idx in seven else (2 if nu[c] == 6 else 1))
                rho = (2 * c + [0, 2, 5, 7, 10][dd]) % 12 if cfg["rot"] else 0
                w = tab[8 * idx + x]
                w[0] = (5 * dh + dd) | rho << 8 | role << 16
                for i, g in enumerate(lst[c]):
                    T, cnt = g16_source(g)
                    w[1 + i] = g | T << 8 | cnt << 16
        for idx in seven[10:]:
            tab[8 * idx + x][0] = 4 << 16
    return tab


def prologue(cfg, pre):
    L = []
    a = lambda s: L.extend("    " + x.strip() if not x.strip().endswith(":") else x.strip() for x in s.strip().split("\n"))
    if cfg["stamps"]:
        a(f"s_memtime s[{sT0stamp}:{sT0stamp + 1}]\ns_memrealtime s[{sStamp}:{sStamp + 1}]")
    a(f"""
    s_cmp_ge_u32 s2, 256
    s_cbranch_scc1 L_exit
    s_load_dwordx8 s[36:43], s[0:1], 0
    s_load_dwordx4 s[44:47], s[0:1], 32
    s_load_dwordx2 s[48:49], s[0:1], 48
    v_lshrrev_b32 v1, 6, v0
    v_and_b32 v0, 63, v0
    s_and_b32 s50, s2, 7
    v_readfirstlane_b32 s{sWave}, v1
    s_lshr_b32 s51, s2, 3
    s_mul_i32 s52, s51, 43
    s_lshr_b32 s52, s52, 8
    s_mul_i32 s53, s52, 6
    s_sub_u32 s53, s51, s53
    s_lshr_b32 s54, s50, 2
    s_and_b32 s55, s50, 3
    s_mul_i32 s56, s55, 6
    s_add_u32 s56, s56, s53
    s_mul_i32 s57, s52, 13
    s_add_u32 s57, s57, 1
    s_lshr_b32 s57, s57, 1
    s_lshl_b32 s58, s54, 5
    s_add_u32 s57, s57, s58
    s_mul_i32 s58, s54, 5
    s_add_u32 s58, s58, s52""")
    if cfg["rot"]:
        a("""
        s_mul_i32 s59, s53, 5
        s_add_u32 s59, s59, 1
        s_mul_i32 s59, s59, 43
        s_lshr_b32 s59, s59, 7
        s_lshl_b32 s4, s52, 1
        s_add_u32 s59, s59, s4
        s_add_u32 s59, s59, s54
        s_add_u32 s59, s59, s55
        s_sub_u32 s4, s59, 10
        s_cmp_ge_u32 s59, 10
        s_cselect_b32 s59, s4, s59
        s_sub_u32 s4, s59, 10
        s_cmp_ge_u32 s59, 10
        s_cselect_b32 s59, s4, s59""")
    else:
        a("s_mov_b32 s59, 0")
    a(f"""
    s_lshl_b32 s{sKX(0)}, s59, 7
    s_add_u32 s4, s{sKX(0)}, 128
    s_cmp_eq_u32 s4, 1280
    s_cselect_b32 s{sKX(1)}, 0, s4
    s_lshl_b32 s{sW1k}, s{sWave}, 10
    s_lshl_b32 s{sW4k}, s{sWave}, 12
    s_lshl_b32 s{sT3}, s{sWave}, 11
    v_lshrrev_b32 v2, 3, v0
    v_and_b32 v3, 7, v0
    v_lshrrev_b32 v4, 4, v0
    v_lshl_add_u32 v5, v1, 3, v2
    v_mul_u32_u24 v5, 1280, v5
    v_lshl_add_u32 v6, v1, 2, v4
    v_and_b32 v6, 7, v6
    v_xor_b32 v6, v6, v3
    v_lshl_add_u32 v5, v6, 4, v5
    s_mul_i32 s4, s57, 40960
    v_add_u32 v{vX}, s4, v5
    v_lshl_add_u32 v5, v1, 4, v2
    v_mul_u32_u24 v5, 3072, v5
    v_and_b32 v6, 1, v4
    v_lshlrev_b32 v6, 1, v6
    v_xor_b32 v6, v6, v3
    v_lshl_add_u32 v5, v6, 4, v5
    s_lshl_b32 s4, s56, 7
    v_add_u32 v{vWg}, s4, v5
    v_xor_b32 v{vWu}, 64, v{vWg}
    s_mov_b32 s{SRD_X + 2}, {M * D * 2}
    s_mov_b32 s{SRD_X + 3}, 0x20000
    s_mov_b32 s{SRD_G + 2}, {D * F * 2}
    s_mov_b32 s{SRD_G + 3}, 0x20000
    s_mov_b32 s{SRD_U + 2}, {D * F * 2}
    s_mov_b32 s{SRD_U + 3}, 0x20000
    s_mov_b32 s{SRD_D + 2}, {D * F * 2}
    s_mov_b32 s{SRD_D + 3}, 0x20000
    s_mov_b32 s{SRD_O + 2}, {M * D * 2}
    s_mov_b32 s{SRD_O + 3}, 0x20000
    s_mov_b32 s{SRD_WS + 2}, {WS_BYTES}
    s_mov_b32 s{SRD_WS + 3}, 0x20000
    s_mov_b32 s{SRD_DBG + 2}, 256
    s_mov_b32 s{SRD_DBG + 3}, 0x20000
    s_waitcnt lgkmcnt(0)
    s_mov_b64 s[{SRD_X}:{SRD_X + 1}], s[36:37]
    s_mov_b64 s[{SRD_G}:{SRD_G + 1}], s[38:39]
    s_mov_b64 s[{SRD_U}:{SRD_U + 1}], s[40:41]
    s_mov_b64 s[{SRD_D}:{SRD_D + 1}], s[42:43]
    s_mov_b64 s[{SRD_O}:{SRD_O + 1}], s[44:45]
    s_mov_b64 s[{SRD_DBG}:{SRD_DBG + 1}], s[46:47]
    s_mov_b64 s[{SRD_WS}:{SRD_WS + 1}], s[48:49]
    DIAG
    s_getpc_b64 s[36:37]
L_pc:
    s_lshl_b32 s38, s2, 5
    s_add_u32 s36, s36, s38
    s_addc_u32 s37, s37, 0
    s_add_u32 s36, s36, L_table-L_pc
    s_addc_u32 s37, s37, 0
    s_mov_b32 s44, s56
    s_mov_b32 s45, s57
    s_mov_b32 s46, s58
    s_load_dwordx8 s[{sTab}:{sTab + 7}], s[36:37], 0
    s_cmp_ge_u32 s51, 30
    s_cbranch_scc1 L_idle""")
    if cfg["stamps"]:
        a(f"s_memtime s[84:85]")
    for t in range(2):
        for pc in pre[t]:
            for o in pc:
                a(o.text)
    a("L_noissue:")
    if cfg["stamps"]:
        a(f"s_memtime s[86:87]")
    for t in range(2, 10):
        a(f"s_add_u32 s36, s{sKX(t - 1)}, 128\ns_cmp_eq_u32 s36, 1280\ns_cselect_b32 s{sKX(t)}, 0, s36")
    a(f"""
    v_mul_u32_u24 v5, 384, v1
    v_add_u32 v5, v5, v2
    v_mul_u32_u24 v5, 1280, v5
    v_lshlrev_b32 v6, 1, v4
    v_xor_b32 v6, v6, v3
    v_lshl_add_u32 v{vWd}, v6, 4, v5
    v_and_b32 v5, 31, v0
    v_lshrrev_b32 v6, 5, v0
    v_bfe_u32 v7, v0, 1, 3
    v_xor_b32 v7, v7, v6
    v_lshlrev_b32 v7, 4, v7
    v_lshl_add_u32 v{vXA(0, 0)}, v5, 7, v7
    v_xor_b32 v{vXA(0, 1)}, 32, v{vXA(0, 0)}
    v_xor_b32 v{vXA(0, 2)}, 64, v{vXA(0, 0)}
    v_xor_b32 v{vXA(0, 3)}, 0x60, v{vXA(0, 0)}""")
    for k in range(4):
        a(f"v_add_u32 v{vXA(1, k)}, 0x10000, v{vXA(0, k)}")
    a(f"""
    v_and_b32 v5, 1, v4
    v_bfe_u32 v7, v0, 2, 2
    v_lshl_add_u32 v50, v6, 3, v7
    v_lshlrev_b32 v50, 7, v50
    v_lshl_add_u32 v50, v5, 13, v50
    v_bfe_u32 v51, v0, 3, 1
    v_lshl_add_u32 v52, v5, 1, v51
    v_xor_b32 v53, v52, v1
    v_lshl_add_u32 v50, v53, 5, v50
    v_and_b32 v53, 3, v0
    v_lshl_add_u32 v{vWA(0)}, v53, 3, v50
    v_add_u32 v{vWA(1)}, 0x10000, v{vWA(0)}
    v_lshlrev_b32 v50, 4, v6
    v_lshl_add_u32 v50, v5, 2, v50
    v_add_u32 v50, v50, v7
    v_lshlrev_b32 v50, 7, v50
    v_lshl_add_u32 v50, v52, 5, v50
    v_lshl_add_u32 v50, v53, 3, v50
    v_lshl_add_u32 v50, v1, 12, v50""")
    for t in range(4):
        a(f"v_xor_b32 v54, {32 * t}, v50\nv_add_u32 v{vDA(t)}, 0x18000, v54\nv_add_u32 v{vDB(t)}, 0x8000, v54")
    a(f"""
    v_and_b32 v7, 15, v0
    s_mov_b32 s36, {HS}
    v_mul_lo_u32 v50, s36, v5
    v_lshrrev_b32 v51, 1, v1
    v_lshl_add_u32 v50, v51, 10, v50
    v_and_b32 v51, 1, v1
    v_lshl_add_u32 v51, v51, 1, v6
    v_lshl_add_u32 v50, v51, 8, v50
    v_lshl_add_u32 v50, v7, 4, v50
    s_mul_i32 s36, s45, {2 * HS}
    s_lshl_b32 s37, s44, 11
    s_add_u32 s36, s36, s37
    s_add_u32 s36, s36, {H_OFF}
    v_add_u32 v{vHs}, s36, v50
    v_mul_u32_u24 v50, 12288, v1
    v_lshl_add_u32 v50, v0, 4, v50
    v_add_u32 v{vHl0}, {H_OFF}, v50
    v_mov_b32 v{vHl[0]}, v{vHl0}
    v_mov_b32 v{vHl[1]}, v{vHl0}
    v_min_u32 v50, 23, v0
    v_lshrrev_b32 v51, 2, v50
    v_mul_u32_u24 v52, 6, v1
    v_add_u32 v51, v51, v52
    v_and_b32 v50, 3, v50
    v_lshlrev_b32 v50, 3, v50
    v_lshl_add_u32 v{vPoll}, v51, 7, v50
    s_mul_i32 s36, s46, 24
    s_add_u32 s36, s36, s44
    s_lshl_b32 s36, s36, 7
    s_add_u32 s36, s36, {FLAG_OFF}
    v_lshlrev_b32 v50, 3, v1
    v_add_u32 v{vFs}, s36, v50
    v_mov_b32 v{vZ}, 0
    v_xor_b32 v50, v4, v7
    v_lshlrev_b32 v50, 4, v50
    v_lshl_add_u32 v50, v7, 8, v50
    v_lshl_add_u32 v{vRW(0)}, v1, 12, v50
    v_xor_b32 v{vRW(1)}, 64, v{vRW(0)}
    v_xor_b32 v{vRW(2)}, 0x80, v{vRW(0)}
    v_xor_b32 v{vRW(3)}, 0xc0, v{vRW(0)}
    v_lshl_add_u32 v50, v1, 2, v4
    v_xor_b32 v51, v50, v7
    v_lshlrev_b32 v51, 4, v51
    v_lshl_add_u32 v{vRR}, v50, 8, v51
    v_mul_u32_u24 v50, 1280, v50
    v_lshl_add_u32 v{vO}, v7, 3, v50
    STAMP_PRE
    s_waitcnt lgkmcnt(0)
    STAMP_POST
    s_and_b32 s36, s{sTab}, 0xff
    s_lshl_b32 s36, s36, 7
    v_add_u32 v{vO}, s36, v{vO}
    v_add_u32 v{vWd}, s36, v{vWd}
    s_lshr_b32 s{sRole}, s{sTab}, 16
    s_bfe_u32 s36, s{sTab}, 0x80008
    s_lshl_b32 s{sKD(0)}, s36, 10""")
    for i in range(1, 12):
        a(f"s_add_u32 s36, s{sKD(i - 1)}, 1024\ns_cmp_eq_u32 s36, 12288\ns_cselect_b32 s{sKD(i)}, 0, s36")
    for u in range(6):
        w = sTab + 1 + u
        a(f"""s_and_b32 s50, s{w}, 0xff
        s_mul_i32 s{sHB(u)}, s50, {HS}
        s_mul_i32 s{sOB(u)}, s50, 20480
        s_bfe_u32 s50, s{w}, 0x80008
        s_mul_i32 s{sFB(u)}, s50, 3072
        s_lshr_b32 s{sNeed(u)}, s{w}, 16""")
    diag = []
    if cfg["diag_delay"]:
        diag += ["s_mov_b32 s40, 0", "L_diag:", "v_mul_f32 v50, v51, v52", "s_add_u32 s40, s40, 1",
                 f"s_cmp_lt_u32 s40, {cfg['diag_delay']}", "s_cbranch_scc1 L_diag"]
    if cfg["diag_chase"]:
        b = dict(D=SRD_D, O=SRD_O, W=SRD_WS)[cfg["diag_buf"]]
        mul, add = (7680, 0) if cfg["diag_buf"] != "W" else (7680, 0x1800000)
        diag += [f"s_mul_i32 s40, s2, {mul}", f"s_add_u32 s40, s40, {add}", "v_mov_b32 v50, s40"]
        for i in range(cfg["diag_chase"]):
            diag += [f"buffer_load_dword v51, v50, {srd(b)}, 0 offen", "s_waitcnt vmcnt(0)", "v_and_b32 v51, 0, v51",
                     f"v_add_u32 v50, {cfg['diag_stride']}, v50", "v_add_u32 v50, v51, v50"]
    k = L.index("    DIAG")
    L[k:k + 1] = [x if x.endswith(":") else "    " + x for x in diag]
    pre_, post_ = "s_nop 0", "s_nop 0"
    if cfg["stamps"]:
        pre_ = "s_memtime s[88:89]"
        post_ = "\n    ".join([f"v_writelane_b32 v{vStamp}, s{sT0stamp}, 0", f"v_writelane_b32 v{vStamp}, s{sStamp}, 61",
                               f"v_writelane_b32 v{vStamp}, s84, 56", f"v_writelane_b32 v{vStamp}, s86, 57",
                               f"v_writelane_b32 v{vStamp}, s88, 58", f"s_memtime s[{sT0stamp}:{sT0stamp + 1}]"])
    L[:] = [l.replace("STAMP_PRE", pre_).replace("STAMP_POST", post_) for l in L if cfg["stamps"] or "STAMP_P" not in l]
    if cfg["stamps"]:
        a(f"s_waitcnt lgkmcnt(0)\nv_writelane_b32 v{vStamp}, s{sT0stamp}, 59\ns_memtime s[{sT0stamp}:{sT0stamp + 1}]\ns_waitcnt lgkmcnt(0)\nv_writelane_b32 v{vStamp}, s{sT0stamp}, 60")
    if cfg["warm"]:
        a("s_mov_b64 exec, 0")
    for code, role in ((1, "B"), (2, "C"), (3, "D")):
        a(f"s_cmp_eq_u32 s{sRole}, {code}\ns_cbranch_scc1 L_{role}_enter")
    a("s_branch L_A_enter")
    a(f"""
L_idle:
    s_cmp_lg_u32 s2, 240
    s_cbranch_scc1 L_noissue
    s_cmp_lg_u32 s{sWave}, 0
    s_cbranch_scc1 L_noissue
    v_mov_b32 v{vZ}, 0
    buffer_load_dwordx2 v[{vTag}:{vTag + 1}], v{vZ}, {srd(SRD_WS)}, 0 offen sc1
    s_waitcnt vmcnt(0)
    v_and_b32 v{vTag}, -8, v{vTag}
    v_add_u32 v{vTag + 1}, 0x7f4a7c15, v{vTag + 1}
    v_add_u32 v{vTag}, 0x9e3779b9, v{vTag}
    s_mov_b64 exec, 1
    buffer_store_dwordx2 v[{vTag}:{vTag + 1}], v{vZ}, {srd(SRD_DBG)}, 0 offen sc1
    s_mov_b64 exec, -1
    s_branch L_noissue""")
    a("L_exit:\ns_endpgm")
    return L


def assemble_sizes(lines):
    txt = '.amdgcn_target "amdgcn-amd-amdhsa--gfx950"\n.text\n'
    body = [re.sub(r"(s_c?branch\w*) \S+", r"\1 0", l) for l in lines if not l.rstrip().endswith(":")]
    with tempfile.TemporaryDirectory() as td:
        open(td + "/a.s", "w").write(txt + "\n".join(body) + "\n")
        subprocess.run(["clang", "-x", "assembler", "-target", "amdgcn-amd-amdhsa", "-mcpu=gfx950",
                        "-c", td + "/a.s", "-o", td + "/a.o"], check=True)
        dis = subprocess.run(["llvm-objdump", "-d", "--mcpu=gfx950", td + "/a.o"],
                             capture_output=True, text=True, check=True).stdout
    sz = [4 * len(m.group(1).split()) for m in re.finditer(r"// [0-9A-F]+: ([0-9A-F ]+)", dis)]
    assert len(sz) == len(body), (len(sz), len(body))
    it = iter(sz)
    return [0 if l.rstrip().endswith(":") else next(it) for l in lines]


def role_text(cfg, role, G, U, pre):
    P = Prog(cfg, role, G, U)
    pre_vm = []
    if G:
        pre = {t: P.stage_pieces(t) for t in range(2)}
        pre_vm = [pc[-1] for t in range(2) for pc in pre[t]]
    P.all_dsr = []
    ops = P.build(pre)
    seen_bar = [o for o in ops if o.kind == "bar" and o.need_lg is not None]
    for k, o in enumerate(ops):
        if o.kind == "bar" and G and k and "P1" not in o.name and o.need_lg == [] and not o.need_vm:
            o.need_lg = [q for q in ops[:k] if q.kind == "dsr"]
    for k, o in enumerate(ops):
        if o.kind == "waitlg":
            o.kind = "misc"
            o.need_lg = [q for q in ops[:k] if q.kind in ("dsr", "dsw")]
    ops, mx = insert_waits(ops, pre_vm)
    check_regs(ops, pre_vm)
    check_lds(ops, pre_vm)
    check_hazards(ops)
    lines = [o.text if o.kind == "label" else "    " + o.text for o in ops]
    end = [f"L_{role}_end:"]
    if cfg["stamps"]:
        end += ["    s_waitcnt vmcnt(0)", f"    v_writelane_b32 v{vStamp}, s{sStamp}, {P.nstamp}",
                f"    s_memtime s[{sStamp}:{sStamp + 1}]", "    s_waitcnt lgkmcnt(0)",
                f"    v_writelane_b32 v{vStamp}, s{sStamp}, {P.nstamp + 1}",
                f"    s_memrealtime s[{sStamp}:{sStamp + 1}]", "    s_waitcnt lgkmcnt(0)",
                f"    v_writelane_b32 v{vStamp}, s{sStamp}, 62", f"    v_writelane_b32 v{vStamp}, s{sRole}, 63",
                f"    s_lshl_b32 s4, s2, 10", f"    s_lshl_b32 s5, s{sWave}, 8", "    s_add_u32 s4, s4, s5",
                f"    s_add_u32 s4, s4, {STAMP_OFF}", "    v_lshlrev_b32 v1, 2, v0",
                f"    buffer_store_dword v{vStamp}, v1, {srd(SRD_WS)}, s4 offen"]
    end.append("    s_endpgm")
    lines += end
    for t in P.ool:
        lines += t.split("\n")
    head = [f"L_{role}_enter:"]
    if cfg["warm"]:
        nhead = 4 * 7 + 4
        sizes = assemble_sizes(lines)
        out, off, nextmark, marks = [], nhead, 4096, []
        for l, s in zip(lines, sizes):
            if s and off >= nextmark:
                pg, ln = nextmark // 4096, (nextmark % 4096) // 64
                marks.append((pg, ln))
                out += [f"L_{role}_w{pg}_{ln}:", f"    s_cbranch_execz @{pg}_{ln}@"]
                off += 4
                nextmark = nextmark + 64 if ln == 0 else (pg + 1) * 4096
            out.append(l)
            off += s
        pages = sorted({p for p, _ in marks})
        txt = "\n".join(out)
        for pg, ln in marks:
            if ln == 0 and (pg, 1) in marks:
                tgt = f"L_{role}_w{pg}_1"
            else:
                tgt = f"L_{role}_w{pg + 4}_0" if pg + 4 in pages else f"L_{role}_go"
            txt = txt.replace(f"@{pg}_{ln}@", tgt)
        for w in range(1, 4):
            tgt = f"L_{role}_w{w}_0" if w in pages else f"L_{role}_go"
            head += [f"    s_cmp_eq_u32 s{sWave}, {w}", f"    s_cbranch_scc1 {tgt}"]
        head += [f"    s_branch L_{role}_w4_0" if 4 in pages else "    s_nop 0",
                 f"L_{role}_go:", "    s_mov_b64 exec, -1"]
        lines = txt.split("\n")
    info = dict(role=role, nops=len(ops), maxvm=mx, stamps=P.stamp_names)
    return [".p2align 12"] + head + lines, info


def generate(cfg):
    ref = open("standalone__glu_gated_reglu__prompt.s.ref").read().split("\n")
    hdr = [l for l in ref if l.startswith(";") and "@launch" not in l]
    hdr.append("; @launch grid=(256,1,1) block=(256,1,1) lds=163840")
    pre = {t: Prog(cfg, "A", 7, 5).stage_pieces(t) for t in range(2)}
    L = hdr + ['.amdgcn_target "amdgcn-amd-amdhsa--gfx950"', ".text", f".globl {NAME}", ".p2align 8",
               f".type {NAME},@function", f"{NAME}:"]
    L += prologue(cfg, pre)
    infos = []
    for role, G, U in (("A", 7, 5), ("B", 6, 5), ("C", 6, 6), ("D", 0, 6)):
        t, info = role_text(cfg, role, G, U, pre)
        L += t
        infos.append(info)
    L += [".p2align 6", ".type L_table,@object", "L_table:"]
    for w in make_table(cfg):
        L.append("    .long " + ", ".join(hex(x) for x in w))
    L += [".size L_table, 8192", '.section .rodata,"a"', ".p2align 6", f".amdhsa_kernel {NAME}",
          "  .amdhsa_next_free_vgpr 512", "  .amdhsa_next_free_sgpr 102", "  .amdhsa_accum_offset 256",
          "  .amdhsa_group_segment_fixed_size 0", "  .amdhsa_kernarg_size 56", "  .amdhsa_user_sgpr_count 2",
          "  .amdhsa_user_sgpr_kernarg_segment_ptr 1", "  .amdhsa_system_sgpr_workgroup_id_x 1",
          "  .amdhsa_float_denorm_mode_32 3", ".end_amdhsa_kernel"]
    return "\n".join(L) + "\n", infos


if __name__ == "__main__":
    cfg = dict(CFG)
    for kv in sys.argv[2:]:
        k, v = kv.split("=", 1)
        assert k in cfg, k
        cfg[k] = v if isinstance(CFG[k], str) else eval(v)
    txt, infos = generate(cfg)
    open(sys.argv[1], "w").write(txt)
    for i in infos:
        print(i)
```
